```python
import torch

def _softmax(x, axis=-1):
    return torch.softmax(x, dim=axis)

def _gelu(x):
    return torch.nn.functional.gelu(x, approximate='tanh')

def _silu(x):
    return torch.nn.functional.silu(x)

def _sigmoid(x):
    return torch.sigmoid(x)

def _layernorm(x, axis=-1, eps=1e-05):
    m = x.mean(dim=axis, keepdim=True)
    v = x.var(dim=axis, keepdim=True, unbiased=False)
    return (x - m) / torch.sqrt(v + eps)

def _scatter_add(tgt, idx, src, axis=0):
    return tgt.clone().index_add_(axis, idx, src)

def _segment_sum(src, seg, n):
    out = torch.zeros((n,) + src.shape[1:], dtype=src.dtype)
    return out.index_add_(0, seg, src)

def _pad(x, pw):
    flat = tuple((v for pair in reversed(pw) for v in pair))
    return torch.nn.functional.pad(x, flat)
kernel_name = 'standalone__dit_adaln_block__diffusion'

def setup_inputs():

    _w = lambda a: (lambda t: t.to(torch.bfloat16) if t.is_floating_point() else t)(torch.as_tensor(a))
    B, N, D = (2, 256, 1152)
    return {'x': _w((lambda *s: torch.randn(*s, dtype=torch.bfloat16) * 0.05)(B, N, D)), 'c': _w((lambda *s: torch.randn(*s, dtype=torch.bfloat16) * 0.2)(B, D)), 'wqkv': _w((lambda *s: torch.randn(*s, dtype=torch.bfloat16) * 0.05)(D, 3 * D)), 'wo': _w((lambda *s: torch.randn(*s, dtype=torch.bfloat16) * 0.05)(D, D)), 'w_mod': _w((lambda *s: torch.randn(*s, dtype=torch.bfloat16) * 0.2)(D, 6 * D))}

def reference(x, c, wqkv, wo, w_mod):
    B, N, D = x.shape
    mod = (_silu(c) @ w_mod).reshape(B, 6, 1, D)
    shift_a, scale_a, gate_a, shift_m, scale_m, gate_m = [mod[:, i] for i in range(6)]
    h = _layernorm(x, axis=-1) * (1 + scale_a) + shift_a
    qkv = h @ wqkv
    q, k, v = (qkv[..., :D].clone(), qkv[..., D:2 * D].clone(), qkv[..., 2 * D:].clone())
    p = _softmax(torch.einsum('bqd,bkd->bqk', q, k) * D ** (-0.5), axis=-1)
    a = torch.einsum('bqk,bkd->bqd', p, v) @ wo
    return x + gate_a * a
```

```python
class Asm:
    def __init__(self):
        self.lines = []
        self.launches = []
        self.kernels = []
        self._lab = 0
    def __call__(self, s):
        for l in s.strip("\n").split("\n"):
            self.lines.append("    " + l.strip() if not l.strip().endswith(":") else l.strip())
    def c(self, s):
        self.lines.append("    ; " + s)
    def label(self, base="L"):
        self._lab += 1
        return "%s_%d" % (base, self._lab)
    def begin_kernel(self, name):
        self.lines.append(".p2align 8")
        self.lines.append(".globl %s" % name)
        self.lines.append(".type %s,@function" % name)
        self.lines.append("%s:" % name)
    def end_kernel(self, name, vgpr, sgpr=102, accum=None, agpr=0):
        if accum is None:
            accum = (vgpr + 3) // 4 * 4
        nfv = accum + agpr if agpr else vgpr
        self.kernels.append((name, nfv, sgpr, accum))
    def launch(self, name, grid, block, lds=0):
        self.launches.append("; @launch kernel=%s grid=(%d,1,1) block=(%d,1,1) lds=%d" % (name, grid, block, lds))
    def text(self, header=""):
        out = []
        out.append(header.rstrip("\n"))
        out += self.launches
        out.append('.amdgcn_target "amdgcn-amd-amdhsa--gfx950"')
        out.append(".text")
        out += self.lines
        out.append('.section .rodata,"a"')
        for name, nfv, sgpr, accum in self.kernels:
            out.append(".p2align 6")
            out.append(".amdhsa_kernel %s" % name)
            out.append("  .amdhsa_next_free_vgpr %d" % nfv)
            out.append("  .amdhsa_next_free_sgpr %d" % sgpr)
            out.append("  .amdhsa_accum_offset %d" % accum)
            out.append("  .amdhsa_group_segment_fixed_size 0")
            out.append("  .amdhsa_kernarg_size 64")
            out.append("  .amdhsa_user_sgpr_count 2")
            out.append("  .amdhsa_user_sgpr_kernarg_segment_ptr 1")
            out.append("  .amdhsa_system_sgpr_workgroup_id_x 1")
            out.append(".end_amdhsa_kernel")
        return "\n".join(out) + "\n"

    def srd(self, d, base, nbytes):
        self("s_mov_b32 s%d, s%d" % (d, base))
        self("s_and_b32 s%d, s%d, 0xffff" % (d + 1, base + 1))
        self("s_mov_b32 s%d, 0x%x" % (d + 2, nbytes))
        self("s_mov_b32 s%d, 0x20000" % (d + 3))
    def srd_off(self, d, base, off, nbytes):
        self("s_add_u32 s%d, s%d, 0x%x" % (d, base, off))
        self("s_addc_u32 s%d, s%d, 0" % (d + 1, base + 1))
        self("s_and_b32 s%d, s%d, 0xffff" % (d + 1, d + 1))
        self("s_mov_b32 s%d, 0x%x" % (d + 2, nbytes))
        self("s_mov_b32 s%d, 0x20000" % (d + 3))

def v(i, n=1):
    return "v%d" % i if n == 1 else "v[%d:%d]" % (i, i + n - 1)
def a(i, n=1):
    return "a%d" % i if n == 1 else "a[%d:%d]" % (i, i + n - 1)
def s(i, n=1):
    return "s%d" % i if n == 1 else "s[%d:%d]" % (i, i + n - 1)

HEADER = """; Kernarg layout for this problem (64 bytes, ptrs only, base s[0:1]):
"""
```

```python
import re
REG = re.compile(r"\b([vas])(?:(\d+)|\[(\d+):(\d+)\])|\b(vcc|exec|m0|scc)\b")
TRANS = ("v_exp_f32", "v_log_f32", "v_rcp_f32", "v_rsq_f32", "v_sqrt_f32", "v_sin_f32", "v_cos_f32", "v_rcp_iflag_f32")

def regs(tok):
    out = set()
    for m in REG.finditer(tok):
        if m.group(5):
            out.add(m.group(5))
        elif m.group(2) is not None:
            out.add(m.group(1) + m.group(2))
        else:
            for i in range(int(m.group(3)), int(m.group(4)) + 1):
                out.add(m.group(1) + str(i))
    return out

def split_ops(rest):
    ops, depth, cur = [], 0, ""
    for ch in rest:
        if ch == "[": depth += 1
        if ch == "]": depth -= 1
        if ch == "," and depth == 0:
            ops.append(cur.strip()); cur = ""
        else:
            cur += ch
    if cur.strip(): ops.append(cur.strip())
    return ops

class I:
    pass

def parse(line):
    s = line.split(";")[0].strip()
    if not s or s.endswith(":") or s.startswith("."):
        return None
    parts = s.split(None, 1)
    op = parts[0]; rest = parts[1] if len(parts) > 1 else ""
    ops = split_ops(rest)
    x = I(); x.op = op; x.w = set(); x.r = set(); x.kind = "other"; x.states = 1
    x.A = x.B = x.C = set(); x.passes = 0; x.dpp = False; x.storedata = set(); x.wide = False
    def R(t):
        return regs(t.split(" op_sel")[0].split(" quad_perm")[0].split(" row_")[0])
    if op == "s_nop":
        x.states = int(ops[0], 0) + 1; x.kind = "nop"; return x
    if op.startswith("v_mfma"):
        x.kind = "mfma"; x.w = R(ops[0]); x.A = R(ops[1]); x.B = R(ops[2]); x.C = R(ops[3]); x.r = x.A | x.B | x.C
        x.passes = 8 if "32x32" in op else 4
        if "f32_16x16x4_f32" in op: x.passes = 8
        if "f32_32x32x2_f32" in op: x.passes = 16
        return x
    if op.startswith("v_"):
        x.kind = "valu"
        x.trans = any(op.startswith(t) for t in TRANS)
        x.dpp = "_dpp" in op or "row_" in rest or "quad_perm" in rest
        if op.startswith("v_cmp"):
            x.w = R(ops[0]);
            for o in ops[1:]: x.r |= R(o)
            if op.startswith("v_cmpx"): x.w.add("exec")
        elif op.startswith("v_permlane") and "swap" in op:
            x.w = R(ops[0]) | R(ops[1]); x.r = set(x.w)
        elif op.startswith(("v_add_co", "v_sub_co", "v_addc_co", "v_subb_co", "v_subrev_co")):
            x.w = R(ops[0]) | R(ops[1])
            for o in ops[2:]: x.r |= R(o)
        else:
            x.w = R(ops[0])
            for o in ops[1:]: x.r |= R(o)
            if op.startswith(("v_fmac", "v_dot2c", "v_pk_fmac", "v_fma_mixhi", "v_fma_mixlo")) or x.dpp: x.r |= x.w
            if op.startswith("v_cndmask") and len(ops) == 3: x.r.add("vcc")
        return x
    if op.startswith(("buffer_", "global_")):
        if "load" in op and " lds" not in (" " + rest) and "load_lds" not in op:
            x.kind = "vload"; x.w = R(ops[0])
            for o in ops[1:]: x.r |= R(o)
        elif "store" in op or "atomic" in op:
            x.kind = "vstore"
            for o in ops: x.r |= R(o)
            if op.startswith("buffer_"): x.storedata = R(ops[0])
            else: x.storedata = R(ops[1])
            x.wide = ("x3" in op or "x4" in op)
            if "atomic" in op and "sc0" in rest:
                x.w = R(ops[0])
        else:
            x.kind = "vdma" if "lds" in (op + rest) else "vmisc"
            for o in ops: x.r |= R(o)
            if x.kind == "vdma": x.r.add("m0")
        return x
    if op.startswith("ds_"):
        if op.startswith(("ds_read", "ds_bpermute", "ds_permute", "ds_swizzle")) or "_rtn" in op:
            x.kind = "dsread"; x.w = R(ops[0])
            for o in ops[1:]: x.r |= R(o)
        else:
            x.kind = "dswrite"
            for o in ops: x.r |= R(o)
        return x
    if op.startswith("s_"):
        x.kind = "salu"
        if op.startswith(("s_load", "s_memtime", "s_memrealtime", "s_buffer_load")): x.kind = "smem"
        if op.startswith(("s_cmp", "s_cbranch", "s_branch", "s_waitcnt", "s_barrier", "s_endpgm", "s_setprio", "s_sleep")):
            for o in ops: x.r |= R(o)
        else:
            if ops: x.w = R(ops[0])
            for o in ops[1:]: x.r |= R(o)
            if "saveexec" in op: x.w.add("exec")
        return x
    raise ValueError("unknown instruction: " + s)

def isv(rs): return {r for r in rs if r[0] in "va" and r not in ("vcc",)}
def iss(rs): return {r for r in rs if (r[0] == "s" and r != "scc") or r == "vcc"}

def need(p, c):
    n = 0
    if p.kind == "valu":
        wv = isv(p.w); ws = iss(p.w)
        if c.kind == "mfma" and wv & c.r: n = max(n, 2)
        if c.kind == "valu":
            if p.trans and not c.trans and wv & c.r: n = max(n, 1)
            if p.trans and c.trans and wv & c.r: n = max(n, 1)
            if c.dpp and wv & c.r: n = max(n, 2)
            if c.op.startswith("v_permlane") and wv & c.r: n = max(n, 2)
            if c.op.startswith(("v_readlane", "v_readfirstlane")) and wv & c.r: n = max(n, 1)
            if ws & c.r:
                n = max(n, 4 if c.op.startswith(("v_readlane", "v_writelane", "v_div_fmas")) else 2)
            if p.op.startswith(("v_fma_mixhi", "v_fma_mixlo")) or "sdwa" in p.op:
                if wv & (c.r | c.w): n = max(n, 1)
            if "exec" in p.w: n = max(n, 5)
        if c.kind in ("vload", "vstore", "vdma", "vmisc") and ws & c.r: n = max(n, 5)
        if c.kind in ("salu", "smem") and ws & c.r: n = max(n, 2)
        if c.kind == "mfma" and "exec" in p.w: n = max(n, 4)
    if p.kind == "mfma":
        t_other = {4: 8, 8: 12, 16: 20}[p.passes]
        t_ovl = {4: 6, 8: 10, 16: 18}[p.passes]
        t_war = {4: 3, 8: 7, 16: 15}[p.passes]
        if c.kind == "mfma":
            if p.w & (c.A | c.B): n = max(n, t_other)
            if p.w & c.C:
                if not (p.w == c.C and p.passes == c.passes): n = max(n, t_ovl)
            if p.w & c.w and not (p.w == c.C): n = max(n, t_other)
        elif c.kind in ("valu", "vload", "vstore", "vdma", "dsread", "dswrite"):
            if p.w & (c.r | c.w): n = max(n, t_other)
            if c.kind == "valu" and p.C & c.w: n = max(n, t_war)
            if c.kind in ("vload", "dsread") and (p.C & c.w): n = max(n, t_war)
    if p.kind == "vstore" and p.wide:
        if p.storedata & c.w: n = max(n, 2)
    if p.kind == "dswrite":
        pass
    if p.kind == "salu" and "m0" in p.w and c.kind == "vdma": n = max(n, 1)
    if p.kind in ("dsread", "vload") and c.kind == "valu" and c.dpp and p.w & c.r: n = max(n, 2)
    return n

def fix(lines, verbose=False):
    out = []; hist = []
    inserted = 0
    for line in lines:
        x = parse(line)
        if x is None:
            out.append(line)
            continue
        req = 0
        d = 0
        for p in reversed(hist):
            nd = need(p, x) - d
            if nd > req: req = nd
            d += p.states
            if d > 24: break
        if req > 0:
            k = req
            while k > 0:
                t = min(k, 16)
                out.append("    s_nop %d" % (t - 1))
                nn = parse("s_nop %d" % (t - 1)); hist.append(nn)
                k -= t
            inserted += req
        out.append(line)
        hist.append(x)
        if len(hist) > 40: hist = hist[-40:]
        if x.op == "s_endpgm" or x.op == "s_branch": hist = []
    if verbose: print("hazard pass inserted", inserted, "wait states")
    return out
```

```python
import sys
sys.path.insert(0, "tools")
from asmlib import *
import hazard

STAMPS = "--stamps" in sys.argv
OUT = [x for x in sys.argv[1:] if not x.startswith("--")]
OUT = OUT[0] if OUT else "standalone__dit_adaln_block__diffusion.s"

XH = 0x0
AS = 0x120000
GATE = AS + 2 * 9216
QKV = 0x140000
WOP = 0x4A0000
VT = 0x728000
PF = 0x848000
MS = 0x888000
WS_BYTES = 268435456
WS_USED = 0x890000

A = Asm()
NST = 4

def stamp(kidx, slot, srd):
    if not STAMPS: return
    A("s_memrealtime s[90:91]")
    A("s_waitcnt lgkmcnt(0)")
    A("v_mov_b32 v250, s90")
    A("v_mov_b32 v251, s91")
    A("s_mul_i32 s92, s2, %d" % (NST * 8))
    A("s_add_u32 s92, s92, %d" % ((128 << 20) + kidx * 65536 + slot * 8))
    A("v_mov_b32 v252, s92")
    A("v_cmp_eq_u32 vcc, 0, v0")
    A("s_and_saveexec_b64 s[94:95], vcc")
    A("buffer_store_dwordx2 v[250:251], v252, %s, 0 offen" % s(srd, 4))
    A("s_mov_b64 exec, s[94:95]")

WSN = WS_BYTES if STAMPS else WS_USED

def bf16_round(dst, src):
    A("v_cvt_pk_bf16_f32 %s, %s, %s" % (dst, src, src))
    A("v_lshlrev_b32 %s, 16, %s" % (dst, dst))

def k1():
    n = "k1_kernel"
    A.begin_kernel(n)
    A("s_cmp_ge_u32 s2, 248")
    A("s_cbranch_scc1 k1_end")
    A("s_load_dwordx4 s[4:7], s[0:1], 0")
    A("s_load_dwordx2 s[8:9], s[0:1], 32")
    A("s_load_dwordx2 s[10:11], s[0:1], 56")
    A("s_mov_b32 s40, 0xffff0000")
    A("s_waitcnt lgkmcnt(0)")
    A.srd(16, 4, 512 * 2304)
    A.srd(20, 6, 2 * 2304)
    A.srd(24, 8, 1152 * 13824)
    A.srd(28, 10, WSN)
    stamp(0, 0, 28)
    A("s_cmp_ge_u32 s2, 216")
    A("s_cbranch_scc1 k1_ln")
    A("s_and_b32 s12, s2, 7")
    A("s_lshr_b32 s13, s2, 3")
    A("s_mul_i32 s12, s12, 27")
    A("s_add_u32 s12, s12, s13")
    A("v_lshlrev_b32 v1, 4, v0")
    A("buffer_load_dwordx4 v[10:13], v1, s[20:23], 0 offen")
    A("buffer_load_dwordx4 v[14:17], v1, s[20:23], 0 offen offset:2304")
    A("v_lshrrev_b32 v2, 1, v0")
    A("v_and_b32 v3, 1, v0")
    A("s_mov_b32 s14, 13824")
    A("v_mul_lo_u32 v4, v2, s14")
    A("v_lshl_add_u32 v4, v3, 4, v4")
    A("s_lshl_b32 s15, s12, 5")
    A("v_add_u32 v4, s15, v4")
    for j in range(9):
        A("s_mov_b32 s33, %d" % (j * 128 * 13824))
        A("buffer_load_dwordx4 %s, v4, s[24:27], s33 offen" % v(20 + 4 * j, 4))
    for i in range(16):
        A("v_mov_b32 v%d, 0" % (60 + i))
    A("s_mov_b32 s34, 0xbfb8aa3b")
    A("s_waitcnt vmcnt(9)")
    for e in range(8):
        for b in range(2):
            src = 10 + 4 * b + e // 2
            x_ = 90 + 2 * e + b
            if e % 2 == 0: A("v_lshlrev_b32 v%d, 16, v%d" % (x_, src))
            else: A("v_and_b32 v%d, s40, v%d" % (x_, src))
    for i in range(16): A("v_mul_f32 v%d, s34, v%d" % (110 + i, 90 + i))
    for i in range(16): A("v_exp_f32 v%d, v%d" % (110 + i, 110 + i))
    for i in range(16): A("v_add_f32 v%d, 1.0, v%d" % (110 + i, 110 + i))
    for i in range(16): A("v_rcp_f32 v%d, v%d" % (110 + i, 110 + i))
    for i in range(16): A("v_mul_f32 v%d, v%d, v%d" % (110 + i, 110 + i, 90 + i))
    for e in range(8): A("v_cvt_pk_bf16_f32 v%d, v%d, v%d" % (80 + e, 110 + 2 * e, 111 + 2 * e))
    A("v_lshlrev_b32 v5, 5, v0")
    A("ds_write_b128 v5, v[80:83]")
    A("ds_write_b128 v5, v[84:87] offset:16")
    A("s_waitcnt lgkmcnt(0)")
    A("s_barrier")
    A("v_lshlrev_b32 v6, 2, v2")
    for j in range(9): A("ds_read_b32 v%d, v6 offset:%d" % (80 + j, j * 512))
    A("s_waitcnt lgkmcnt(0)")
    for j in range(9):
        A("v_lshlrev_b32 v%d, 16, v%d" % (90 + 2 * j, 80 + j))
        A("v_and_b32 v%d, s40, v%d" % (91 + 2 * j, 80 + j))
    for j in range(9):
        A("s_waitcnt vmcnt(%d)" % (8 - j))
        for q in range(4):
            w = 20 + 4 * j + q
            A("v_lshlrev_b32 v110, 16, v%d" % w)
            A("v_and_b32 v111, s40, v%d" % w)
            for b in range(2):
                A("v_fmac_f32 v%d, v110, v%d" % (60 + 8 * b + 2 * q, 90 + 2 * j + b))
                A("v_fmac_f32 v%d, v111, v%d" % (61 + 8 * b + 2 * q, 90 + 2 * j + b))
    for sh in (2, 4, 8):
        for i in range(16):
            A("v_add_f32_dpp v%d, v%d, v%d row_ror:%d row_mask:0xf bank_mask:0xf" % (60 + i, 60 + i, 60 + i, sh))
    A("v_lshrrev_b32 v7, 4, v0")
    A("v_lshlrev_b32 v7, 7, v7")
    A("v_lshl_add_u32 v7, v3, 6, v7")
    A("v_and_b32 v8, 15, v0")
    A("v_cmp_gt_u32 vcc, 2, v8")
    A("s_and_saveexec_b64 s[36:37], vcc")
    for q in range(4):
        A("ds_write_b128 v7, %s offset:%d" % (v(60 + 4 * q, 4), 8192 + 16 * q))
    A("s_mov_b64 exec, s[36:37]")
    A("s_waitcnt lgkmcnt(0)")
    A("s_barrier")
    A("v_cmp_gt_u32 vcc, 32, v0")
    A("s_and_saveexec_b64 s[36:37], vcc")
    A("s_cbranch_execz k1_gemv_done")
    A("v_lshrrev_b32 v9, 4, v0")
    A("v_bfe_u32 v10, v0, 3, 1")
    A("v_and_b32 v11, 7, v0")
    A("v_lshlrev_b32 v12, 6, v10")
    A("v_lshl_add_u32 v12, v9, 5, v12")
    A("v_lshl_add_u32 v12, v11, 2, v12")
    for p in range(16): A("ds_read_b32 v%d, v12 offset:%d" % (20 + p, 8192 + p * 128))
    A("s_cmp_ge_u32 s12, 72")
    A("s_cselect_b32 s41, 1, 0")
    A("s_cmp_ge_u32 s12, 144")
    A("s_cselect_b32 s42, 1, 0")
    A("s_add_u32 s43, s41, s42")
    A("s_mul_i32 s44, s43, 72")
    A("s_sub_u32 s44, s12, s44")
    A("s_cmp_eq_u32 s43, 1")
    A("s_cselect_b32 s45, 1.0, 0")
    A("s_cselect_b32 s46, 0, 32")
    A("s_cmp_eq_u32 s43, 2")
    A("s_cbranch_scc1 k1_gate_addr")
    A("v_mul_u32_u24 v13, 9216, v9")
    A("v_lshl_add_u32 v13, v10, 6, v13")
    A("v_lshl_add_u32 v13, v11, 2, v13")
    A("s_lshl_b32 s47, s44, 7")
    A("s_add_u32 s47, s47, s46")
    A("s_add_u32 s47, s47, %d" % AS)
    A("s_branch k1_addr_done")
    A("k1_gate_addr:")
    A("v_mul_u32_u24 v13, 4608, v9")
    A("v_and_b32 v14, 15, v0")
    A("v_lshl_add_u32 v13, v14, 2, v13")
    A("s_lshl_b32 s47, s44, 6")
    A("s_add_u32 s47, s47, %d" % GATE)
    A("k1_addr_done:")
    A("s_waitcnt lgkmcnt(0)")
    for st in (8, 4, 2, 1):
        for p in range(st): A("v_add_f32 v%d, v%d, v%d" % (20 + p, 20 + p, 20 + p + st))
    bf16_round("v20", "v20")
    A("v_add_f32 v20, s45, v20")
    bf16_round("v20", "v20")
    A("buffer_store_dword v20, v13, s[28:31], s47 offen")
    A("k1_gemv_done:")
    A("s_mov_b64 exec, -1")
    stamp(0, 1, 28)
    A("s_endpgm")
    A("k1_ln:")
    A("s_sub_u32 s12, s2, 216")
    A("v_and_b32 v1, 15, v0")
    A("v_bfe_u32 v2, v0, 4, 2")
    A("v_lshrrev_b32 v3, 6, v0")
    A("v_mul_u32_u24 v4, 2304, v1")
    A("v_lshl_add_u32 v4, v2, 4, v4")
    A("v_mul_u32_u24 v5, 576, v3")
    A("v_add_u32 v4, v4, v5")
    A("s_mul_i32 s13, s12, %d" % (16 * 2304))
    for j in range(9):
        A("buffer_load_dwordx4 %s, v4, s[16:19], s13 offen offset:%d" % (v(10 + 4 * j, 4), 64 * j))
    A("v_lshrrev_b32 v6, 4, v0")
    A("v_lshlrev_b32 v6, 2, v6")
    A("v_lshl_add_u32 v6, v1, 6, v6")
    A("v_lshlrev_b32 v7, 6, v1")
    X = 50
    A("v_mov_b32 v130, 0")
    A("v_mov_b32 v131, 0")
    for j in range(9):
        A("s_waitcnt vmcnt(%d)" % (8 - j))
        for q in range(4):
            A("v_lshlrev_b32 v%d, 16, v%d" % (X + 8 * j + 2 * q, 10 + 4 * j + q))
            A("v_and_b32 v%d, s40, v%d" % (X + 8 * j + 2 * q + 1, 10 + 4 * j + q))
            A("v_add_f32 v130, v130, v%d" % (X + 8 * j + 2 * q))
            A("v_add_f32 v131, v131, v%d" % (X + 8 * j + 2 * q + 1))
    def xreduce(off):
        A("v_add_f32 v130, v130, v131")
        A("ds_write_b32 v6, v130 offset:%d" % off)
        A("s_waitcnt lgkmcnt(0)")
        A("s_barrier")
        for q in range(4): A("ds_read_b128 %s, v7 offset:%d" % (v(132 + 4 * q, 4), off + 16 * q))
        A("s_waitcnt lgkmcnt(0)")
        for st in (8, 4, 2, 1):
            for p in range(st): A("v_add_f32 v%d, v%d, v%d" % (132 + p, 132 + p, 132 + p + st))
    xreduce(0)
    A("s_mov_b32 s35, 0x3a638e39")
    A("v_mul_f32 v150, s35, v132")
    A("v_mov_b32 v130, 0")
    A("v_mov_b32 v131, 0")
    for i in range(72):
        A("v_sub_f32 v%d, v%d, v150" % (X + i, X + i))
        A("v_fmac_f32 v%d, v%d, v%d" % (130 + (i & 1), X + i, X + i))
    xreduce(1024)
    A("v_mul_f32 v151, s35, v132")
    bf16_round("v151", "v151")
    A("v_add_f32 v151, 0x3727c5ac, v151")
    bf16_round("v151", "v151")
    A("v_sqrt_f32 v151, v151")
    bf16_round("v151", "v151")
    A("v_rcp_f32 v151, v151")
    bf16_round("v152", "v150")
    A("v_sub_f32 v152, v150, v152")
    A("v_mul_f32 v152, v152, v151")
    A("v_and_b32 v8, 63, v0")
    A("v_lshlrev_b32 v8, 4, v8")
    A("v_mul_u32_u24 v9, 9216, v3")
    A("v_add_u32 v8, v8, v9")
    A("s_mul_i32 s13, s12, %d" % (36 * 1024))
    A("s_add_u32 s13, s13, %d" % XH)
    for j in range(9):
        for q in range(4):
            i = 8 * j + 2 * q
            A("v_fma_f32 v%d, v%d, v151, v152" % (X + i, X + i))
            A("v_fma_f32 v%d, v%d, v151, v152" % (X + i + 1, X + i + 1))
            A("v_cvt_pk_f16_f32 v%d, v%d, v%d" % (10 + 4 * j + q, X + i, X + i + 1))
        if j and j % 4 == 0: A("s_add_u32 s13, s13, 4096")
        A("buffer_store_dwordx4 %s, v8, s[28:31], s13 offen offset:%d" % (v(10 + 4 * j, 4), (j % 4) * 1024))
    stamp(0, 1, 28)
    A("k1_end:")
    A("s_endpgm")
    A.end_kernel(n, 256 if STAMPS else 160)
    A.launch(n, 248, 256, 16384)

def k2():
    n = "k2_kernel"
    A.begin_kernel(n)
    A("s_cmp_ge_u32 s2, 256")
    A("s_cbranch_scc1 k2_end")
    A("s_load_dwordx4 s[4:7], s[0:1], 16")
    A("s_load_dwordx2 s[10:11], s[0:1], 56")
    A("v_lshrrev_b32 v1, 6, v0")
    A("v_and_b32 v2, 63, v0")
    A("v_readfirstlane_b32 s12, v1")
    A("v_and_b32 v3, 15, v2")
    A("v_lshrrev_b32 v4, 4, v2")
    A("s_mov_b32 s40, 0x05040100")
    A("s_mov_b32 s41, 0x07060302")
    A("s_waitcnt lgkmcnt(0)")
    A.srd(16, 4, 1152 * 6912)
    A.srd(20, 6, 1152 * 2304)
    A.srd(28, 10, WSN)
    stamp(1, 0, 28)
    A("s_cmp_ge_u32 s2, 216")
    A("s_cbranch_scc1 k2_pack")
    A("s_and_b32 s13, s2, 7")
    A("s_lshr_b32 s14, s2, 3")
    A("s_mul_i32 s13, s13, 27")
    A("s_add_u32 s13, s13, s14")
    A("s_lshr_b32 s14, s13, 3")
    A("s_and_b32 s15, s13, 7")
    A("v_lshlrev_b32 v5, 4, v2")
    A("s_lshr_b32 s33, s15, 2")
    A("s_mul_i32 s33, s33, 9216")
    A("s_mul_i32 s34, s12, 2304")
    A("s_add_u32 s33, s33, s34")
    A("s_add_u32 s33, s33, %d" % AS)
    ST = 220
    for i in range(3):
        A("buffer_load_dwordx4 %s, v5, s[28:31], s33 offen offset:%d" % (v(ST + 4 * i, 4), 1024 * i))
    for m in range(4):
        A("s_add_u32 s35, s12, %d" % m)
        A("s_and_b32 s35, s35, 3")
        A("s_lshl_b32 s36, s15, 2")
        A("s_add_u32 s35, s35, s36")
        A("s_mul_i32 s35, s35, 36")
        A("s_mul_i32 s36, s12, 9")
        A("s_add_u32 s35, s35, s36")
        A("s_lshl_b32 s%d, s35, 10" % (44 + m))
        if XH: A("s_add_u32 s%d, s%d, %d" % (44 + m, 44 + m, XH))
    for r in range(8): A("s_mov_b32 s%d, %d" % (48 + r, r * 6912))
    A("s_mul_i32 s35, s12, %d" % (288 * 6912))
    A("s_lshl_b32 s36, s14, 8")
    A("s_add_u32 s35, s35, s36")
    A("v_mul_u32_u24 v6, %d, v4" % (8 * 6912))
    A("v_lshl_add_u32 v6, v3, 4, v6")
    A("v_add_u32 v6, s35, v6")
    A("v_mov_b32 v7, v5")
    DEPTH = 3
    WR = 10
    XR = WR + 32 * DEPTH
    H = XR + 16 * DEPTH
    F = H + 32
    AB = F + 12
    T0 = AB + 16
    assert T0 + 6 <= ST
    def loadX(k):
        for m in range(4):
            A("buffer_load_dwordx4 %s, v7, s[28:31], s%d offen" % (v(XR + 16 * (k % DEPTH) + 4 * m, 4), 44 + m))
        A("v_add_u32 v7, 0x400, v7")
    def loadW(k):
        for r in range(8):
            A("buffer_load_dwordx4 %s, v6, s[16:19], s%d offen" % (v(WR + 32 * (k % DEPTH) + 4 * r, 4), 48 + r))
        A("v_add_u32 v6, %d, v6" % (32 * 6912))
    order = []
    for i in range(3): order.append("st")
    for k in range(DEPTH):
        loadX(k); order += [("X", k)] * 4
        loadW(k); order += [("W", k)] * 8
    def wait_for(tag):
        last = max(i for i, t in enumerate(order) if t == tag)
        return "s_waitcnt vmcnt(%d)" % (len(order) - 1 - last)
    A("s_mul_i32 s35, s12, 3072")
    A("v_add_u32 v8, s35, v5")
    A("v_lshl_add_u32 v9, v4, 6, s35")
    A(wait_for("st"))
    for i in range(3): A("ds_write_b128 v8, %s offset:%d" % (v(ST + 4 * i, 4), 1024 * i))
    def readAB(k):
        return ["ds_read_b128 %s, v9 offset:%d" % (v(AB + 4 * q, 4), k * 256 + 16 * q) for q in range(4)]
    def mod_ops(k):
        ops = []
        for m in range(4):
            for q in range(4):
                src = XR + 16 * (k % DEPTH) + 4 * m + q
                t0, t1 = T0 + 2 * (q & 1), T0 + 2 * (q & 1) + 1
                ops.append("v_fma_mix_f32 v%d, v%d, v%d, v%d op_sel_hi:[1,0,0]" % (t0, src, AB + 2 * q, AB + 8 + 2 * q))
                ops.append("v_fma_mix_f32 v%d, v%d, v%d, v%d op_sel:[1,0,0] op_sel_hi:[1,0,0]" % (t1, src, AB + 2 * q + 1, AB + 8 + 2 * q + 1))
                ops.append("v_cvt_pk_bf16_f32 v%d, v%d, v%d" % (H + 16 * (k & 1) + 4 * m + q, t0, t1))
        return ops
    def perm_ops(k, j):
        base = WR + 32 * (k % DEPTH)
        return ["v_perm_b32 v%d, v%d, v%d, s%d" % (F + 4 * (j % 3) + q, base + 4 * (2 * q + 1) + (j >> 1), base + 4 * (2 * q) + (j >> 1), 40 + (j & 1)) for q in range(4)]
    def mfma(k, j, m):
        acc = a(16 * j + 4 * m, 4)
        return "v_mfma_f32_16x16x32_bf16 %s, %s, %s, %s" % (acc, v(F + 4 * (j % 3), 4), v(H + 16 * (k & 1) + 4 * m, 4), "0" if k == 0 else acc)
    A("s_waitcnt lgkmcnt(0)")
    for l in readAB(0): A(l)
    A(wait_for(("X", 0)))
    A("s_waitcnt lgkmcnt(0)")
    for l in mod_ops(0): A(l)
    for k in range(9):
        if k + DEPTH < 9:
            loadX(k + DEPTH); order += [("X", k + DEPTH)] * 4
        if k + 1 < 9:
            for l in readAB(k + 1): A(l)
        A(wait_for(("W", k)))
        for l in perm_ops(k, 0): A(l)
        for l in perm_ops(k, 1): A(l)
        fill = []
        if k + 1 < 9:
            fill = mod_ops(k + 1)
        first_fill = True
        fi = 0
        for j in range(8):
            pj = perm_ops(k, j + 2) if j + 2 < 8 else []
            for m in range(4):
                A(mfma(k, j, m))
                if m < len(pj) and False: pass
                if pj: A(pj[m])
                nf = 2 if j >= 1 else 0
                if j >= 6: nf = 3
                for _ in range(nf):
                    if fi < len(fill):
                        if first_fill:
                            A(wait_for(("X", k + 1)))
                            A("s_waitcnt lgkmcnt(0)")
                            first_fill = False
                        A(fill[fi]); fi += 1
            if j == 5 and k + DEPTH < 9:
                loadW(k + DEPTH); order += [("W", k + DEPTH)] * 8
        while fi < len(fill):
            A(fill[fi]); fi += 1
    stamp(1, 1, 28)
    RED = 12288
    for m in range(1, 4):
        A("s_add_u32 s35, s12, %d" % m)
        A("s_and_b32 s35, s35, 3")
        A("s_mul_i32 s35, s35, 24576")
        A("s_add_u32 s35, s35, %d" % (RED + (m - 1) * 8192))
        A("v_add_u32 v%d, s35, v5" % (9 + m))
    for m in range(1, 4):
        for j in range(8):
            A("ds_write_b128 v%d, %s offset:%d" % (9 + m, a(16 * j + 4 * m, 4), j * 1024))
    R0 = 20
    for j in range(8):
        for r in range(4): A("v_accvgpr_read_b32 v%d, a%d" % (R0 + 4 * j + r, 16 * j + r))
    A("s_mul_i32 s35, s12, 24576")
    A("s_add_u32 s35, s35, %d" % RED)
    A("v_add_u32 v13, s35, v5")
    A("s_mul_i32 s36, s14, 7282")
    A("s_lshr_b32 s36, s36, 16")
    A("s_mul_i32 s37, s36, 9")
    A("s_sub_u32 s37, s14, s37")
    A("s_lshl_b32 s36, s36, 5")
    A("s_lshl_b32 s38, s15, 2")
    A("s_add_u32 s36, s36, s38")
    A("s_add_u32 s36, s36, s12")
    A("s_mul_i32 s36, s36, 36")
    A("s_lshl_b32 s37, s37, 2")
    A("s_add_u32 s36, s36, s37")
    A("s_lshl_b32 s36, s36, 10")
    A("s_add_u32 s36, s36, %d" % QKV)
    A("s_waitcnt lgkmcnt(0)")
    A("s_barrier")
    RD = 60
    for sl in range(3):
        for j in range(8):
            A("ds_read_b128 %s, v13 offset:%d" % (v(RD + 32 * sl + 4 * j, 4), sl * 8192 + j * 1024))
    for sl in range(3):
        for j in range(8):
            rem = 24 - (sl * 8 + j + 1)
            A("s_waitcnt lgkmcnt(%d)" % min(rem, 15))
            for r in range(4):
                A("v_add_f32 v%d, v%d, v%d" % (R0 + 4 * j + r, R0 + 4 * j + r, RD + 32 * sl + 4 * j + r))
    O = 160
    for f in range(4):
        for q in range(4):
            A("v_cvt_pk_bf16_f32 v%d, v%d, v%d" % (O + 4 * f + q, R0 + 4 * (2 * q) + f, R0 + 4 * (2 * q + 1) + f))
        A("buffer_store_dwordx4 %s, v5, s[28:31], s36 offen offset:%d" % (v(O + 4 * f, 4), f * 1024))
    stamp(1, 2, 28)
    A("s_endpgm")
    A("k2_pack:")
    A("s_sub_u32 s13, s2, 216")
    A("v_mul_u32_u24 v6, %d, v4" % (32 * 2304))
    A("v_lshl_add_u32 v6, v3, 4, v6")
    A("s_mul_i32 s35, s12, %d" % (8 * 2304))
    A("v_add_u32 v6, s35, v6")
    A("v_lshrrev_b32 v7, 1, v3")
    A("v_mul_u32_u24 v7, %d, v7" % (36 * 1024))
    A("v_and_b32 v8, 1, v3")
    A("v_lshl_add_u32 v7, v8, 7, v7")
    A("v_lshl_add_u32 v7, v4, 8, v7")
    for u in range(3):
        A("s_add_u32 s%d, s13, %d" % (60 + u, 40 * u))
        A("s_min_u32 s%d, s%d, 80" % (60 + u, 60 + u))
        A("s_mul_i32 s36, s%d, 7282" % (60 + u))
        A("s_lshr_b32 s36, s36, 16")
        A("s_mul_i32 s37, s36, 9")
        A("s_sub_u32 s37, s%d, s37" % (60 + u))
        A("s_mul_i32 s38, s36, %d" % (128 * 2304))
        A("s_lshl_b32 s39, s37, 8")
        A("s_add_u32 s38, s38, s39")
        A("s_mul_i32 s39, s37, 288")
        A("s_lshl_b32 s36, s36, 2")
        A("s_add_u32 s39, s39, s36")
        A("s_add_u32 s39, s39, s12")
        A("s_lshl_b32 s39, s39, 10")
        A("s_add_u32 s%d, s39, %d" % (64 + u, WOP))
        if u == 2:
            A("s_cmp_lg_u32 s13, 0")
            A("s_cbranch_scc1 k2_pack_l2")
        for p in range(8):
            A("buffer_load_dwordx4 %s, v6, s[20:23], s38 offen" % v(10 + 32 * u + 4 * p, 4))
            if p < 7: A("s_add_u32 s38, s38, 2304")
    A("k2_pack_l2:")
    A("s_waitcnt vmcnt(0)")
    for u in range(3):
        if u == 2:
            A("s_cmp_lg_u32 s13, 0")
            A("s_cbranch_scc1 k2_pack_done")
        base = 10 + 32 * u
        for j in range(8):
            fb = 110 + 4 * j + 32 * (u & 1)
            for q in range(4):
                A("v_perm_b32 v%d, v%d, v%d, s%d" % (fb + q, base + 4 * (2 * q + 1) + (j >> 1), base + 4 * (2 * q) + (j >> 1), 40 + (j & 1)))
            A("buffer_store_dwordx4 %s, v7, s[28:31], s%d offen offset:%d" % (v(fb, 4), 64 + u, j * 16))
    A("k2_pack_done:")
    stamp(1, 2, 28)
    A("k2_end:")
    A("s_endpgm")
    A.end_kernel(n, 256, accum=256, agpr=128)
    A.launch(n, 256, 256, 12288 + 98304)

def k3():
    n = "k3_kernel"
    A.begin_kernel(n)
    A("s_cmp_ge_u32 s2, 256")
    A("s_cbranch_scc1 k3_end")
    A("s_load_dwordx2 s[10:11], s[0:1], 56")
    A("v_lshrrev_b32 v1, 6, v0")
    A("v_and_b32 v2, 63, v0")
    A("v_readfirstlane_b32 s12, v1")
    A("v_lshlrev_b32 v5, 4, v2")
    A("s_and_b32 s13, s2, 7")
    A("s_lshr_b32 s14, s2, 3")
    A("s_lshr_b32 s15, s13, 2")
    A("s_and_b32 s16, s13, 3")
    A("s_mul_i32 s17, s12, 9216")
    A("s_waitcnt lgkmcnt(0)")
    A.srd(28, 10, WSN)
    stamp(2, 0, 28)
    A("v_add_u32 v6, s17, v5")
    A("v_add_u32 v7, 0x1000, v6")
    A("v_add_u32 v8, 0x2000, v6")
    def off(k):
        return 6 + k // 4, (k % 4) * 1024
    A("s_cmp_ge_u32 s14, 24")
    A("s_cbranch_scc1 k3_s")
    A("s_and_b32 s18, s14, 3")
    A("s_lshl_b32 s19, s15, 2")
    A("s_add_u32 s18, s18, s19")
    A("s_lshr_b32 s19, s14, 2")
    A("s_mul_i32 s20, s16, 6")
    A("s_add_u32 s19, s19, s20")
    for m in range(4):
        A("s_add_u32 s35, s12, %d" % m)
        A("s_and_b32 s35, s35, 3")
        A("s_lshl_b32 s36, s18, 2")
        A("s_add_u32 s35, s35, s36")
        A("s_mul_i32 s35, s35, %d" % (36 * 1024))
        A("s_add_u32 s%d, s35, %d" % (44 + m, QKV + 64 * 36 * 1024))
    for c in range(3):
        A("s_mul_i32 s35, s19, %d" % (3 * 36 * 1024))
        A("s_add_u32 s%d, s35, %d" % (48 + c, WOP + c * 36 * 1024))
    VB = 12
    WB = 64
    for k in range(9):
        vr, im = off(k)
        for c in range(3):
            A("buffer_load_dwordx4 %s, v%d, s[28:31], s%d offen offset:%d" % (a(WB + 12 * k + 4 * c, 4), vr, 48 + c, im))
        for m in range(4):
            A("buffer_load_dwordx4 %s, v%d, s[28:31], s%d offen offset:%d" % (v(VB + 16 * k + 4 * m, 4), vr, 44 + m, im))
    RED = 0
    for m in range(1, 4):
        A("s_add_u32 s35, s12, %d" % m)
        A("s_and_b32 s35, s35, 3")
        A("s_mul_i32 s35, s35, 9216")
        A("s_add_u32 s35, s35, %d" % (RED + (m - 1) * 3072))
        A("v_add_u32 v%d, s35, v5" % (160 + m))
    A("v_add_u32 v160, s17, v5")
    for k in range(9):
        for m in range(4):
            A("s_waitcnt vmcnt(%d)" % (63 - 7 * k - 4 - m))
            for c in range(3):
                acc = v(170 + 4 * c, 4) if m == 0 else a(12 * m + 4 * c, 4)
                A("v_mfma_f32_16x16x32_bf16 %s, %s, %s, %s" % (acc, v(VB + 16 * k + 4 * m, 4), a(WB + 12 * k + 4 * c, 4), "0" if k == 0 else acc))
    stamp(2, 1, 28)
    for m in range(1, 4):
        for c in range(3):
            A("ds_write_b128 v%d, %s offset:%d" % (160 + m, a(12 * m + 4 * c, 4), c * 1024))
    A("s_and_b32 s35, s18, 3")
    A("s_lshl_b32 s35, s35, 2")
    A("s_add_u32 s35, s35, s12")
    A("s_lshr_b32 s36, s35, 1")
    A("s_and_b32 s37, s35, 1")
    A("s_mul_i32 s38, s15, 72")
    A("s_mul_i32 s39, s19, 3")
    A("s_add_u32 s38, s38, s39")
    A("s_lshl_b32 s38, s38, 3")
    A("s_add_u32 s38, s38, s36")
    A("s_lshl_b32 s38, s38, 10")
    A("s_lshl_b32 s37, s37, 3")
    A("s_add_u32 s38, s38, s37")
    A("s_add_u32 s38, s38, %d" % VT)
    A("s_waitcnt lgkmcnt(0)")
    A("s_barrier")
    for sl in range(3):
        for c in range(3):
            A("ds_read_b128 %s, v160 offset:%d" % (v(12 + 12 * sl + 4 * c, 4), sl * 3072 + c * 1024))
    for sl in range(3):
        for c in range(3):
            A("s_waitcnt lgkmcnt(%d)" % (8 - 3 * sl - c))
            for r in range(4):
                A("v_add_f32 v%d, v%d, v%d" % (170 + 4 * c + r, 170 + 4 * c + r, 12 + 12 * sl + 4 * c + r))
    for c in range(3):
        A("v_cvt_pk_bf16_f32 v%d, v%d, v%d" % (60 + 2 * c, 170 + 4 * c, 171 + 4 * c))
        A("v_cvt_pk_bf16_f32 v%d, v%d, v%d" % (61 + 2 * c, 172 + 4 * c, 173 + 4 * c))
        A("buffer_store_dwordx2 %s, v5, s[28:31], s38 offen" % v(60 + 2 * c, 2))
        if c < 2: A("s_add_u32 s38, s38, 8192")
    stamp(2, 2, 28)
    A("s_endpgm")
    A("k3_s:")
    A("s_sub_u32 s14, s14, 24")
    A("s_and_b32 s18, s16, 1")
    A("s_lshl_b32 s18, s18, 2")
    A("s_and_b32 s19, s14, 3")
    A("s_add_u32 s18, s18, s19")
    A("s_lshr_b32 s19, s16, 1")
    A("s_lshl_b32 s19, s19, 1")
    A("s_lshr_b32 s20, s14, 2")
    A("s_add_u32 s19, s19, s20")
    for m in range(4):
        A("s_lshl_b32 s35, s15, 4")
        A("s_lshl_b32 s36, s19, 2")
        A("s_add_u32 s35, s35, s36")
        A("s_mul_i32 s35, s35, %d" % (36 * 1024))
        A("s_add_u32 s%d, s35, %d" % (44 + m, QKV + (32 + m) * 36 * 1024))
    for c in range(2):
        A("s_lshl_b32 s35, s15, 4")
        A("s_lshl_b32 s36, s18, 1")
        A("s_add_u32 s35, s35, s36")
        A("s_mul_i32 s35, s35, %d" % (36 * 1024))
        A("s_add_u32 s%d, s35, %d" % (48 + c, QKV + c * 36 * 1024))
    for k in range(9):
        vr, im = off(k)
        for c in range(2):
            A("buffer_load_dwordx4 %s, v%d, s[28:31], s%d offen offset:%d" % (a(WB + 8 * k + 4 * c, 4), vr, 48 + c, im))
        for m in range(4):
            A("buffer_load_dwordx4 %s, v%d, s[28:31], s%d offen offset:%d" % (v(VB + 16 * k + 4 * m, 4), vr, 44 + m, im))
    A("s_lshl_b32 s35, s12, 13")
    A("v_add_u32 v160, s35, v5")
    A("s_and_b32 s35, s12, 1")
    A("s_lshl_b32 s35, s35, 12")
    A("s_lshr_b32 s36, s12, 1")
    A("s_lshl_b32 s37, s36, 11")
    A("s_add_u32 s38, s35, s37")
    A("v_add_u32 v161, s38, v5")
    A("s_xor_b32 s37, s37, 2048")
    A("s_add_u32 s38, s35, s37")
    A("v_add_u32 v162, s38, v5")
    for k in range(9):
        for m in range(4):
            A("s_waitcnt vmcnt(%d)" % (54 - 6 * k - 3 - m))
            for c in range(2):
                acc = a(16 * c + 4 * m, 4)
                A("v_mfma_f32_16x16x32_bf16 %s, %s, %s, %s" % (acc, v(VB + 16 * k + 4 * m, 4), a(WB + 8 * k + 4 * c, 4), "0" if k == 0 else acc))
    stamp(2, 1, 28)
    for c in range(2):
        for m in range(4):
            A("ds_write_b128 v160, %s offset:%d" % (a(16 * c + 4 * m, 4), c * 4096 + m * 1024))
    A("s_lshl_b32 s38, s15, 4")
    A("s_lshl_b32 s39, s18, 1")
    A("s_add_u32 s38, s38, s39")
    A("s_and_b32 s39, s12, 1")
    A("s_add_u32 s38, s38, s39")
    A("s_lshl_b32 s42, s38, 8")
    A("s_lshl_b32 s43, s19, 2")
    A("s_add_u32 s42, s42, s43")
    A("s_add_u32 s42, s42, %d" % MS)
    A("s_lshl_b32 s38, s38, 3")
    A("s_lshl_b32 s39, s19, 1")
    A("s_add_u32 s38, s38, s39")
    A("s_add_u32 s38, s38, s36")
    A("s_lshl_b32 s38, s38, 10")
    A("s_add_u32 s38, s38, %d" % PF)
    A("s_mov_b32 s40, 0x3d2e1a5d")
    import struct, math
    cs = struct.unpack("<I", struct.pack("<f", math.log2(math.e) * 1152 ** -0.5))[0]
    A.lines[-1] = "    s_mov_b32 s40, 0x%08x" % cs
    A("s_waitcnt lgkmcnt(0)")
    A("s_barrier")
    for sw in range(4):
        for t in range(4):
            A("ds_read_b128 %s, v%d offset:%d" % (v(12 + 16 * sw + 4 * t, 4), 161 + (t >> 1), sw * 8192 + (t & 1) * 1024))
    for sw in range(1, 4):
        A("s_waitcnt lgkmcnt(%d)" % (12 - 4 * sw))
        for i in range(16):
            A("v_add_f32 v%d, v%d, v%d" % (12 + i, 12 + i, 12 + 16 * sw + i))
    A("v_max3_f32 v80, v12, v13, v14")
    for i in range(15, 27, 2): A("v_max3_f32 v80, v80, v%d, v%d" % (i, i + 1))
    A("v_max_f32 v80, v80, v27")
    A("v_mov_b32 v81, v80")
    A("v_permlane16_swap_b32 v80, v81")
    A("v_max_f32 v80, v80, v81")
    A("v_mov_b32 v81, v80")
    A("v_permlane32_swap_b32 v80, v81")
    A("v_max_f32 v80, v80, v81")
    A("v_mul_f32 v80, s40, v80")
    for i in range(8): A("v_fma_f32 v%d, v%d, s40, -v80" % (12 + i, 12 + i))
    for i in range(8): A("v_exp_f32 v%d, v%d" % (12 + i, 12 + i))
    for q in range(4): A("v_cvt_pk_bf16_f32 v%d, v%d, v%d" % (84 + q, 12 + 2 * q, 13 + 2 * q))
    A("buffer_store_dwordx4 v[84:87], v5, s[28:31], s38 offen")
    A("v_cmp_gt_u32 vcc, 16, v2")
    A("s_and_saveexec_b64 s[36:37], vcc")
    A("buffer_store_dword v80, v5, s[28:31], s42 offen")
    A("s_mov_b64 exec, s[36:37]")
    stamp(2, 2, 28)
    A("k3_end:")
    A("s_endpgm")
    A.end_kernel(n, 256, accum=256, agpr=176)
    A.launch(n, 256, 256, 36864)

def k4():
    n = "k4_kernel"
    A.begin_kernel(n)
    A("s_cmp_ge_u32 s2, 192")
    A("s_cbranch_scc1 k4_end")
    A("s_load_dwordx2 s[4:5], s[0:1], 0")
    A("s_load_dwordx2 s[6:7], s[0:1], 40")
    A("s_load_dwordx2 s[10:11], s[0:1], 56")
    A("v_lshrrev_b32 v1, 6, v0")
    A("v_and_b32 v2, 63, v0")
    A("v_readfirstlane_b32 s12, v1")
    A("v_lshlrev_b32 v5, 4, v2")
    A("v_add_u32 v6, 0x1000, v5")
    A("v_and_b32 v3, 15, v2")
    A("v_lshrrev_b32 v4, 4, v2")
    A("s_and_b32 s13, s2, 7")
    A("s_lshr_b32 s14, s2, 3")
    A("s_lshr_b32 s15, s13, 2")
    A("s_and_b32 s16, s13, 3")
    A("s_and_b32 s17, s14, 7")
    A("s_lshl_b32 s17, s17, 1")
    A("s_lshl_b32 s18, s15, 4")
    A("s_add_u32 s17, s17, s18")
    A("s_and_b32 s18, s12, 1")
    A("s_add_u32 s17, s17, s18")
    A("s_lshr_b32 s18, s14, 3")
    A("s_lshl_b32 s18, s18, 1")
    A("s_mul_i32 s19, s16, 6")
    A("s_add_u32 s18, s18, s19")
    A("s_lshr_b32 s19, s12, 1")
    A("s_add_u32 s18, s18, s19")
    A("s_lshl_b32 s44, s17, 13")
    A("s_add_u32 s44, s44, %d" % PF)
    A("s_mul_i32 s35, s15, 72")
    A("s_mul_i32 s36, s18, 3")
    A("s_add_u32 s35, s35, s36")
    A("s_lshl_b32 s35, s35, 13")
    for c in range(3): A("s_add_u32 s%d, s35, %d" % (45 + c, VT + c * 8192))
    A("s_lshl_b32 s48, s17, 8")
    A("s_add_u32 s48, s48, %d" % MS)
    A("s_waitcnt lgkmcnt(0)")
    A.srd(20, 4, 512 * 2304)
    A.srd(24, 6, 512 * 2304)
    A.srd(28, 10, WSN)
    stamp(3, 0, 28)
    PB = 12
    VB = 44
    A("v_lshlrev_b32 v7, 4, v3")
    A("buffer_load_dwordx4 v[140:143], v7, s[28:31], s48 offen")
    for k in range(8):
        vr, im = 5 + k // 4, (k % 4) * 1024
        A("buffer_load_dwordx4 %s, v%d, s[28:31], s44 offen offset:%d" % (v(PB + 4 * k, 4), vr, im))
        for c in range(3):
            A("buffer_load_dwordx4 %s, v%d, s[28:31], s%d offen offset:%d" % (v(VB + 12 * k + 4 * c, 4), vr, 45 + c, im))
    A("v_mul_u32_u24 v8, 2304, v3")
    A("v_lshl_add_u32 v8, v4, 3, v8")
    A("s_mul_i32 s49, s17, %d" % (16 * 2304))
    A("s_mul_i32 s35, s18, 96")
    A("s_add_u32 s49, s49, s35")
    for c in range(3):
        A("buffer_load_dwordx2 %s, v8, s[20:23], s49 offen offset:%d" % (v(144 + 2 * c, 2), 32 * c))
    A("v_lshlrev_b32 v9, 4, v4")
    A("s_mul_i32 s50, s15, 4608")
    A("s_mul_i32 s35, s18, 192")
    A("s_add_u32 s50, s50, s35")
    A("s_add_u32 s50, s50, %d" % GATE)
    for c in range(3):
        A("buffer_load_dwordx4 %s, v9, s[28:31], s50 offen offset:%d" % (v(152 + 4 * c, 4), 64 * c))
    ONES = 164
    for q in range(4): A("v_mov_b32 v%d, 0x3f803f80" % (ONES + q))
    total = 1 + 32 + 6
    A("s_waitcnt vmcnt(%d)" % (total - 1))
    A("v_max3_f32 v168, v140, v141, v142")
    A("v_max_f32 v168, v168, v143")
    for j in range(4): A("v_sub_f32 v%d, v%d, v168" % (140 + j, 140 + j))
    for j in range(4): A("v_exp_f32 v%d, v%d" % (140 + j, 140 + j))
    ACC = 172
    for k in range(8):
        grp = k >> 1
        A("s_waitcnt vmcnt(%d)" % (total - 1 - 4 * k - 1))
        acc = v(ACC + 16 * grp + 12, 4)
        A("v_mfma_f32_16x16x32_bf16 %s, %s, %s, %s" % (acc, v(ONES, 4), v(PB + 4 * k, 4), "0" if k % 2 == 0 else acc))
        for c in range(3):
            A("s_waitcnt vmcnt(%d)" % (total - 1 - 4 * k - 2 - c))
            acc = v(ACC + 16 * grp + 4 * c, 4)
            A("v_mfma_f32_16x16x32_bf16 %s, %s, %s, %s" % (acc, v(VB + 12 * k + 4 * c, 4), v(PB + 4 * k, 4), "0" if k % 2 == 0 else acc))
    for i in list(range(12)) + [12]:
        A("v_mul_f32 v%d, v140, v%d" % (12 + i, ACC + i))
    for grp in range(1, 4):
        for i in list(range(12)) + [12]:
            A("v_fmac_f32 v%d, v%d, v%d" % (12 + i, 140 + grp, ACC + 16 * grp + i))
    A("v_rcp_f32 v24, v24")
    A("s_mov_b32 s40, 0xffff0000")
    A("s_waitcnt vmcnt(0)")
    for c in range(3):
        for r in range(4):
            i = 4 * c + r
            A("v_mul_f32 v%d, v%d, v24" % (12 + i, 12 + i))
            src = 144 + 2 * c + (r >> 1)
            if r & 1: A("v_and_b32 v30, s40, v%d" % src)
            else: A("v_lshlrev_b32 v30, 16, v%d" % src)
            A("v_fma_f32 v%d, v%d, v%d, v30" % (12 + i, 12 + i, 152 + i))
        A("v_cvt_pk_bf16_f32 v%d, v%d, v%d" % (32 + 2 * c, 12 + 4 * c, 13 + 4 * c))
        A("v_cvt_pk_bf16_f32 v%d, v%d, v%d" % (33 + 2 * c, 14 + 4 * c, 15 + 4 * c))
        A("buffer_store_dwordx2 %s, v8, s[24:27], s49 offen offset:%d" % (v(32 + 2 * c, 2), 32 * c))
    stamp(3, 1, 28)
    A("k4_end:")
    A("s_endpgm")
    A.end_kernel(n, 256 if STAMPS else 240)
    A.launch(n, 192, 256, 0)

k1(); k2(); k3(); k4()
A.lines = hazard.fix(A.lines, verbose=True)
open(OUT, "w").write(A.text(HEADER))
```

```python
import sys, struct, math
sys.path.insert(0, "tools")
from asmlib import *
import hazard

STAMPS = "--stamps" in sys.argv
OUT = [x for x in sys.argv[1:] if not x.startswith("--")]
OUT = OUT[0] if OUT else "standalone__dit_adaln_block__diffusion.s"
NAME = "standalone__dit_adaln_block__diffusion_kernel"

XH = 0x0
PART = 0x120000
QKV = 0x140000
WOP = 0x4A0000
VT = 0x728000
PF = 0x848000
MS = 0x888000
FLG = 0x890000
FQ = FLG
FX = FQ + 216 * 128
FW = FX + 32 * 128
FP = FW + 81 * 128
FV = FP + 128 * 128
WS_USED = FV + 128 * 128
WS_BYTES = 268435456
WSN = WS_BYTES if STAMPS else WS_USED
NST = 16
POLL_LIMIT = 1 << 17

L_AB = 0
L_RED = 12288
L_SI = 110592
L_GR = 112640
LDS_BYTES = 120832

SX, SC, SWQ, SWO, SWM, SOUT, SDBG, SWS, SWP = 20, 24, 28, 32, 36, 40, 44, 48, 52
WAVE, XCD, SLOT, NONCE, LIN, NT, MT = 56, 57, 58, 59, 60, 61, 62
PLO, PHI, MASK = 64, 65, 66
CNT = 67
A = Asm()
nstamp = [0]
def stamp(i):
    if not STAMPS: return
    A("s_memrealtime s[%d:%d]" % (80 + 2 * i, 81 + 2 * i))
    A("s_waitcnt lgkmcnt(0)")
def dump_stamps(n=11):
    if not STAMPS: return
    A("s_waitcnt vmcnt(0) lgkmcnt(0)")
    A("s_mul_i32 s14, s2, %d" % (NST * 8))
    A("s_add_u32 s14, s14, %d" % (128 << 20))
    A("v_mov_b32 v252, 0")
    A("v_cmp_eq_u32 vcc, 0, v0")
    A("s_and_saveexec_b64 s[16:17], vcc")
    for i in range(n):
        A("v_mov_b32 v250, s%d" % (80 + 2 * i))
        A("v_mov_b32 v251, s%d" % (81 + 2 * i))
        A("buffer_store_dwordx2 v[250:251], v252, %s, s14 offen offset:%d" % (s(SWS, 4), 8 * i))
    A("s_mov_b64 exec, s[16:17]")

def bf16_round(dst, src):
    A("v_cvt_pk_bf16_f32 %s, %s, %s" % (dst, src, src))
    A("v_lshlrev_b32 %s, 16, %s" % (dst, dst))

def poll(vaddr, vtmp, soff="0"):
    L = A.label("poll"); D = A.label("polld")
    A("s_mov_b32 s%d, 0" % CNT)
    A(L + ":")
    A("buffer_load_dword v%d, v%d, %s, %s offen sc0 sc1" % (vtmp, vaddr, s(SWS, 4), soff))
    A("s_waitcnt vmcnt(0)")
    A("v_cmp_ne_u32 vcc, s%d, v%d" % (NONCE, vtmp))
    A("s_cbranch_vccz " + D)
    A("s_add_u32 s%d, s%d, 1" % (CNT, CNT))
    A("s_cmp_lt_u32 s%d, %d" % (CNT, POLL_LIMIT))
    A("s_cbranch_scc1 " + L)
    A(D + ":")

def get_nonce(vz, vt):
    L = A.label("nonce"); D = A.label("nonced")
    A("v_mov_b32 v%d, 0" % vz)
    A("s_mov_b32 s%d, 0" % CNT)
    A(L + ":")
    A("buffer_load_dword v%d, v%d, %s, 0 offen sc0 sc1" % (vt, vz, s(SDBG, 4)))
    A("s_waitcnt vmcnt(0)")
    A("v_readfirstlane_b32 s%d, v%d" % (NONCE, vt))
    A("s_cmp_lg_u32 s%d, 0" % NONCE)
    A("s_cbranch_scc1 " + D)
    A("s_add_u32 s%d, s%d, 1" % (CNT, CNT))
    A("s_cmp_lt_u32 s%d, %d" % (CNT, POLL_LIMIT))
    A("s_cbranch_scc1 " + L)
    A(D + ":")

def set_flag(soff, vz, vt):
    A("v_mov_b32 v%d, 0" % vz)
    A("v_mov_b32 v%d, s%d" % (vt, NONCE))
    A("v_cmp_eq_u32 vcc, 0, v0")
    A("s_and_saveexec_b64 s[0:1], vcc")
    A("buffer_store_dword v%d, v%d, %s, %s offen sc0 sc1" % (vt, vz, s(SWS, 4), soff))
    A("s_mov_b64 exec, s[0:1]")

def tag_bytes(base):
    for i in range(4):
        A("s_bfe_u32 s%d, s%d, 0x%x" % (base + i, NONCE, (8 << 16) | (8 * i)))

def div9(dst, rem, src):
    A("s_mul_i32 s%d, s%d, 7282" % (dst, src))
    A("s_lshr_b32 s%d, s%d, 16" % (dst, dst))
    A("s_mul_i32 s%d, s%d, 9" % (rem, dst))
    A("s_sub_u32 s%d, s%d, s%d" % (rem, src, rem))

A.begin_kernel(NAME)
A("s_cmp_ge_u32 s2, 256")
A("s_cbranch_scc1 L_end")
A("s_load_dwordx16 s[4:19], s[0:1], 0")
A("s_memrealtime s[80:81]")
A("v_lshrrev_b32 v1, 6, v0")
A("v_and_b32 v2, 63, v0")
A("v_readfirstlane_b32 s%d, v1" % WAVE)
A("v_and_b32 v3, 15, v2")
A("v_lshrrev_b32 v4, 4, v2")
A("v_lshlrev_b32 v5, 4, v2")
A("s_and_b32 s%d, s2, 7" % XCD)
A("s_lshr_b32 s%d, s2, 3" % SLOT)
A("s_mov_b32 s%d, 0x05040100" % PLO)
A("s_mov_b32 s%d, 0x07060302" % PHI)
A("s_mov_b32 s%d, 0xffff0000" % MASK)
A("s_mul_i32 s%d, s%d, 28" % (LIN, XCD))
A("s_mul_i32 s63, s%d, 24" % XCD)
A("s_add_u32 s63, s63, 24")
A("s_min_u32 s%d, s%d, s63" % (LIN, LIN))
A("s_add_u32 s%d, s%d, s%d" % (LIN, LIN, SLOT))
A("s_lshr_b32 s%d, s%d, 3" % (NT, LIN))
A("s_and_b32 s%d, s%d, 7" % (MT, LIN))
A("s_waitcnt lgkmcnt(0)")
A.srd(SC, 6, 2 * 2304)
A.srd(SWM, 12, 1152 * 13824)
A.srd(SX, 4, 512 * 2304)
A.srd(SDBG, 16, 256)
A.srd(SWS, 18, WSN)
A("s_or_b32 s63, s2, s%d" % WAVE)
A("s_cmp_lg_u32 s63, 0")
A("s_cbranch_scc1 L_nononce")
A("s_or_b32 s63, s80, 1")
A("v_mov_b32 v6, s63")
A("v_mov_b32 v7, 0")
A("buffer_store_dword v6, v7, %s, 0 offen sc0 sc1" % s(SDBG, 4))
A("L_nononce:")
A("s_cmp_lt_u32 s%d, 6" % XCD)
A("s_cselect_b32 s63, 28, 24")
A("s_cmp_ge_u32 s%d, s63" % SLOT)
A("s_cbranch_scc1 L_aux")

GW = 44
GA = 80
GS = 96
A("s_and_b32 s68, s%d, 3" % LIN)
A("s_lshr_b32 s69, s%d, 2" % LIN)
A("s_mul_i32 s70, s68, 576")
A("v_lshlrev_b32 v6, 2, v0")
A("buffer_load_dword v120, v6, %s, s70 offen" % s(SC, 4))
A("buffer_load_dword v121, v6, %s, s70 offen offset:2304" % s(SC, 4))
A("v_lshrrev_b32 v7, 3, v0")
A("v_and_b32 v8, 7, v0")
A("v_mul_u32_u24 v9, 13824, v7")
A("v_lshl_add_u32 v9, v8, 4, v9")
A("s_mul_i32 s71, s68, %d" % (288 * 13824))
A("s_lshl_b32 s72, s69, 7")
A("s_add_u32 s71, s71, s72")
for j in range(9):
    A("buffer_load_dwordx4 %s, v9, %s, s71 offen nt" % (v(GW + 4 * j, 4), s(SWM, 4)))
    if j < 8: A("s_add_u32 s71, s71, %d" % (32 * 13824))
A.srd(SWQ, 8, 1152 * 6912)
A.srd(SOUT, 14, 512 * 2304)
A("s_mov_b32 s%d, s%d" % (SWP, SWS))
A("s_mov_b32 s%d, s%d" % (SWP + 1, SWS + 1))
A("s_cmp_lt_u32 s%d, 16" % SLOT)
A("s_cselect_b32 s%d, s%d, 0" % (SWP + 2, SWS + 2))
A("s_mov_b32 s%d, 0x20000" % (SWP + 3))
A("s_lshl_b32 s63, s%d, 2" % MT)
div9(13, 4, 63)
for k in range(1, 9):
    A("s_add_u32 s%d, s%d, 1" % (4 + k, 3 + k))
    A("s_cmp_eq_u32 s%d, 9" % (4 + k))
    A("s_cselect_b32 s%d, 0, s%d" % (4 + k, 4 + k))
for i in range(16): A("v_mov_b32 v%d, 0" % (GA + i))
A("s_mov_b32 s73, 0xbfb8aa3b")
A("s_waitcnt vmcnt(9)")
stamp(1)
A("v_lshlrev_b32 v122, 16, v120")
A("v_lshlrev_b32 v123, 16, v121")
A("v_and_b32 v124, s%d, v120" % MASK)
A("v_and_b32 v125, s%d, v121" % MASK)
for i in range(4): A("v_mul_f32 v%d, s73, v%d" % (126 + i, 122 + i))
for i in range(4): A("v_exp_f32 v%d, v%d" % (126 + i, 126 + i))
for i in range(4): A("v_add_f32 v%d, 1.0, v%d" % (126 + i, 126 + i))
for i in range(4): A("v_rcp_f32 v%d, v%d" % (126 + i, 126 + i))
for i in range(4): A("v_mul_f32 v%d, v%d, v%d" % (126 + i, 126 + i, 122 + i))
A("v_cvt_pk_bf16_f32 v130, v126, v127")
A("v_cvt_pk_bf16_f32 v131, v128, v129")
A("v_lshlrev_b32 v10, 3, v0")
A("ds_write_b64 v10, v[130:131] offset:%d" % (L_SI - 65536 + 65536 if L_SI < 65536 else 0)) if False else None
A("v_add_u32 v10, %d, v10" % L_SI)
A("ds_write_b64 v10, v[130:131]")
A("s_waitcnt lgkmcnt(0)")
A("s_barrier")
A("v_lshlrev_b32 v10, 2, v7")
A("v_add_u32 v10, %d, v10" % L_SI)
for j in range(9): A("ds_read_b32 v%d, v10 offset:%d" % (120 + j, j * 128))
A("v_mov_b32 v11, 0")
A("buffer_load_dword v134, v11, %s, 0 offen sc0 sc1" % s(SDBG, 4))
for r in range(8): A("s_mov_b32 s%d, %d" % (72 + r - 4 + 0, 0)) if False else None
A("s_mul_i32 s13, s%d, %d" % (WAVE, 288 * 6912))
A("s_lshl_b32 s14, s%d, 8" % NT)
A("s_add_u32 s13, s13, s14")
A("v_mul_u32_u24 v6, %d, v4" % (8 * 6912))
A("v_lshl_add_u32 v6, v3, 4, v6")
A("v_add_u32 v6, s13, v6")
A("s_mov_b32 s18, s68")
A("s_mov_b32 s19, s69")
WRO = 68
for r in range(8): A("s_mov_b32 s%d, %d" % (WRO + r, r * 6912))
XO = 76
for m in range(4):
    A("s_add_u32 s13, s%d, %d" % (WAVE, m))
    A("s_and_b32 s13, s13, 3")
    A("s_lshl_b32 s14, s%d, 2" % MT)
    A("s_add_u32 s13, s13, s14")
    A("s_mul_i32 s13, s13, 36")
    A("s_mul_i32 s14, s%d, 9" % WAVE)
    A("s_add_u32 s13, s13, s14")
    A("s_lshl_b32 s%d, s13, 10" % (XO + m))
A("v_mov_b32 v135, %d" % (32 * 6912))
DW, DX = 4, 3
WR = 12; XR = WR + 32 * DW; H = XR + 16 * DX; F = H + 32; AB = F + 12; T0 = AB + 16
assert T0 + 4 <= 252
def waddr(k): return "v_mad_u32_u24 v9, s%d, v7, v6" % (4 + k)
def wload(k, r): return "buffer_load_dwordx4 %s, v9, %s, s%d offen nt" % (v(WR + 32 * (k % DW) + 4 * r, 4), s(SWQ, 4), WRO + r)
def xaddr(k): return "v_lshl_add_u32 v10, s%d, 10, v5" % (4 + k)
def xload(k, m): return "buffer_load_dwordx4 %s, v10, %s, s%d offen sc1" % (v(XR + 16 * (k % DX) + 4 * m, 4), s(SWS, 4), XO + m)
A("s_waitcnt lgkmcnt(0)")
for j in range(9):
    A("v_lshlrev_b32 v%d, 16, v%d" % (GS + 2 * j, 120 + j))
    A("v_and_b32 v%d, s%d, v%d" % (GS + 2 * j + 1, MASK, 120 + j))
A("v_mov_b32 v136, v8")
A("v_mov_b32 v7, v135")
for j in range(9):
    A("s_waitcnt vmcnt(%d)" % (9 - j))
    for q in range(4):
        w = GW + 4 * j + q
        A("v_lshlrev_b32 v130, 16, v%d" % w)
        A("v_and_b32 v131, s%d, v%d" % (MASK, w))
        for b in range(2):
            A("v_fmac_f32 v%d, v130, v%d" % (GA + 8 * b + 2 * q, GS + 2 * j + b))
            A("v_fmac_f32 v%d, v131, v%d" % (GA + 8 * b + 2 * q + 1, GS + 2 * j + b))
stamp(2)
for i in range(16):
    A("v_add_f32_dpp v%d, v%d, v%d row_ror:8 row_mask:0xf bank_mask:0xf" % (GA + i, GA + i, GA + i))
A("v_lshrrev_b32 v10, 4, v0")
A("v_lshlrev_b32 v10, 9, v10")
A("v_lshl_add_u32 v10, v136, 5, v10")
A("v_add_u32 v10, %d, v10" % L_GR)
A("v_and_b32 v11, 8, v0")
A("v_cmp_eq_u32 vcc, 0, v11")
A("s_and_saveexec_b64 s[16:17], vcc")
for q in range(4):
    A("ds_write_b128 v10, %s offset:%d" % (v(GA + 4 * q, 4), (q >> 1) * 256 + (q & 1) * 16))
A("s_mov_b64 exec, s[16:17]")
A("s_waitcnt vmcnt(0)")
A("v_readfirstlane_b32 s%d, v134" % NONCE)
A("s_cmp_lg_u32 s%d, 0" % NONCE)
A("s_cbranch_scc1 L_have_nonce")
get_nonce(11, 134)
A("L_have_nonce:")
A("s_waitcnt lgkmcnt(0)")
A("s_barrier")
A("s_cmp_lg_u32 s%d, 0" % WAVE)
A("s_cbranch_scc1 L_gemv_pub_done")
A("v_and_b32 v10, 31, v2")
A("v_lshlrev_b32 v10, 4, v10")
A("v_lshrrev_b32 v11, 5, v2")
A("v_lshl_add_u32 v11, v11, 12, v10")
A("v_add_u32 v11, %d, v11" % L_GR)
for p in range(8): A("ds_read_b128 %s, v11 offset:%d" % (v(GW + 4 * p, 4), p * 512))
tag_bytes(13)
A("v_bfe_u32 v120, v2, 4, 1")
A("v_mul_u32_u24 v120, %d, v120" % (4 * 13824))
A("v_lshl_add_u32 v120, v3, 4, v120")
A("s_mul_i32 s17, s18, 13824")
A("s_lshl_b32 s63, s19, 8")
A("s_add_u32 s17, s17, s63")
A("s_add_u32 s17, s17, %d" % PART)
A("s_movk_i32 s63, 0xff00")
A("s_waitcnt lgkmcnt(0)")
for st in (4, 2, 1):
    for p in range(st):
        for e in range(4): A("v_add_f32 v%d, v%d, v%d" % (GW + 4 * p + e, GW + 4 * p + e, GW + 4 * (p + st) + e))
for e in range(4): A("v_mov_b32 v%d, v%d" % (GW + 4 + e, GW + e))
for e in range(4): A("v_permlane32_swap_b32 v%d, v%d" % (GW + e, GW + 4 + e))
for e in range(4): A("v_add_f32 v%d, v%d, v%d" % (GW + e, GW + e, GW + 4 + e))
for e in range(4):
    A("v_and_b32 v%d, s63, v%d" % (GW + e, GW + e))
    A("v_or_b32 v%d, s%d, v%d" % (GW + e, 13 + e, GW + e))
A("v_cmp_gt_u32 vcc, 32, v2")
A("s_and_saveexec_b64 s[14:15], vcc")
A("buffer_store_dwordx4 %s, v120, %s, s17 offen sc0 sc1" % (v(GW, 4), s(SWS, 4)))
A("s_mov_b64 exec, s[14:15]")
A("L_gemv_pub_done:")
A("s_barrier")
stamp(3)
for k in range(DW):
    A(waddr(k))
    for r in range(8): A(wload(k, r))
stamp(4)
A("v_and_b32 v252, 3, v2")
A("v_lshlrev_b32 v252, 7, v252")
A("s_lshl_b32 s13, s%d, 9" % MT)
A("s_add_u32 s13, s13, %d" % FX)
poll(252, 253, "s13")
stamp(5)
G = H
A("s_lshr_b32 s13, s%d, 2" % MT)
A("s_mul_i32 s13, s13, %d" % (4 * 13824))
A("s_mul_i32 s14, s%d, 1152" % WAVE)
A("s_add_u32 s13, s13, s14")
A("s_add_u32 s13, s13, %d" % PART)
for kq in range(1, 4): A("s_add_u32 s%d, s13, %d" % (13 + kq, kq * 13824))
A("v_mov_b32 v252, v5")
A("v_add_u32 v253, 0x400, v5")
A("v_cmp_lt_u32 vcc, 7, v2")
A("v_add_u32 v254, %d, v253" % (4608 - 1152))
A("v_cndmask_b32 v253, v253, v254, vcc")
A("v_min_u32 v254, 15, v2")
A("v_lshlrev_b32 v254, 4, v254")
A("v_add_u32 v254, %d, v254" % (2048 + 4608 - 1152))
def gather():
    for i in range(3):
        for kq in range(4):
            A("buffer_load_dwordx4 %s, v%d, %s, s%d offen sc0 sc1" % (v(G + 16 * i + 4 * kq, 4), 252 + i, s(SWS, 4), 13 + kq))
gather()
for k in range(DX):
    A(xaddr(k))
    for m in range(4): A(xload(k, m))
A("s_mov_b32 s%d, 0" % CNT)
A("s_lshr_b32 s17, s%d, 8" % NONCE)
A("s_lshr_b32 s18, s%d, 16" % NONCE)
A("s_lshr_b32 s19, s%d, 24" % NONCE)
A("s_waitcnt vmcnt(%d)" % (4 * DX))
A("L_gchk:")
tg = [NONCE, 17, 18, 19]
A("v_xor_b32 v255, s%d, v%d" % (tg[0], G))
for i in range(1, 48):
    A("v_bitop3_b32 v255, v%d, s%d, v255 bitop3:0xbe" % (G + i, tg[i & 3]))
A("v_and_b32 v255, 0xff, v255")
A("v_cmp_ne_u32 vcc, 0, v255")
A("s_cbranch_vccz L_gok")
A("s_add_u32 s%d, s%d, 1" % (CNT, CNT))
A("s_cmp_lt_u32 s%d, %d" % (CNT, POLL_LIMIT))
A("s_cbranch_scc0 L_gok")
gather()
A("s_waitcnt vmcnt(0)")
A("s_branch L_gchk")
A("L_gok:")
stamp(6)
A("s_movk_i32 s63, 0xff00")
for i in range(48): A("v_and_b32 v%d, s63, v%d" % (G + i, G + i))
for i in range(3):
    for e in range(4):
        b = G + 16 * i + e
        A("v_add_f32 v%d, v%d, v%d" % (b, b, b + 4))
        A("v_add_f32 v%d, v%d, v%d" % (b + 8, b + 8, b + 12))
        A("v_add_f32 v%d, v%d, v%d" % (b, b, b + 8))
A("v_cmp_lt_u32 vcc, 7, v2")
A("v_cndmask_b32 v255, 0, 1.0, vcc")
for i in range(3):
    for e in range(4):
        b = G + 16 * i + e
        bf16_round("v%d" % b, "v%d" % b)
        if i > 0:
            A("v_add_f32 v%d, %s, v%d" % (b, "v255" if i == 1 else "1.0", b))
            bf16_round("v%d" % b, "v%d" % b)
A("s_mul_i32 s13, s%d, 3072" % WAVE)
def ab_addr(dst, qreg, extra):
    A("v_lshrrev_b32 v%d, 1, v%d" % (dst, qreg))
    A("v_lshlrev_b32 v%d, 6, v%d" % (dst, dst))
    A("v_and_b32 v%d, 1, v%d" % (qreg, qreg))
    A("v_lshl_add_u32 v%d, v%d, 4, v%d" % (dst, qreg, dst))
    A("v_add3_u32 v%d, v%d, s13, %s" % (dst, dst, extra))
A("v_mov_b32 v11, v2")
ab_addr(252, 11, "32")
A("v_add_u32 v11, 64, v2")
A("v_subrev_u32 v8, 8, v2")
A("v_cndmask_b32 v11, v11, v8, vcc")
A("v_cndmask_b32 v8, 32, 0, vcc")
ab_addr(253, 11, "v8")
A("v_min_u32 v11, 15, v2")
A("v_add_u32 v11, 56, v11")
ab_addr(254, 11, "0")
for i in range(3): A("ds_write_b128 v%d, %s" % (252 + i, v(G + 16 * i, 4)))
A("v_lshl_add_u32 v8, v4, 6, s13")
def abaddr(k): return "v_lshl_add_u32 v11, s%d, 8, v8" % (4 + k)
def readAB(k): return [abaddr(k)] + ["ds_read_b128 %s, v11 offset:%d" % (v(AB + 4 * q, 4), 16 * q) for q in range(4)]
def mod_ops(k):
    ops = []
    for m in range(4):
        for q in range(4):
            src = XR + 16 * (k % DX) + 4 * m + q
            t0, t1 = T0 + 2 * (q & 1), T0 + 2 * (q & 1) + 1
            ops.append("v_fma_mix_f32 v%d, v%d, v%d, v%d op_sel_hi:[1,0,0]" % (t0, src, AB + 2 * q, AB + 8 + 2 * q))
            ops.append("v_fma_mix_f32 v%d, v%d, v%d, v%d op_sel:[1,0,0] op_sel_hi:[1,0,0]" % (t1, src, AB + 2 * q + 1, AB + 8 + 2 * q + 1))
            ops.append("v_cvt_pk_bf16_f32 v%d, v%d, v%d" % (H + 16 * (k & 1) + 4 * m + q, t0, t1))
    return ops
def perm_ops(k, j):
    base = WR + 32 * (k % DW)
    return ["v_perm_b32 v%d, v%d, v%d, s%d" % (F + 4 * (j % 3) + q, base + 4 * (2 * q + 1) + (j >> 1), base + 4 * (2 * q) + (j >> 1), PLO + (j & 1)) for q in range(4)]
def mfma(k, j, m):
    acc = a(16 * j + 4 * m, 4)
    return "v_mfma_f32_16x16x32_bf16 %s, %s, %s, %s" % (acc, v(F + 4 * (j % 3), 4), v(H + 16 * (k & 1) + 4 * m, 4), "0" if k == 0 else acc)
order = []
for k in range(DX): order += [("X", k)] * 4
def wait_for(tag):
    idx = [i for i, t in enumerate(order) if t == tag]
    if not idx: return None
    return "s_waitcnt vmcnt(%d)" % (len(order) - 1 - max(idx))
A("s_waitcnt lgkmcnt(0)")
for l in readAB(0): A(l)
A(wait_for(("X", 0)))
A("s_waitcnt lgkmcnt(0)")
for l in mod_ops(0): A(l)

TB, CB = 14, 15
A("s_lshr_b32 s%d, s%d, 1" % (TB, XCD))
A("s_lshl_b32 s%d, s%d, 2" % (TB, TB))
A("s_and_b32 s13, s%d, 3" % SLOT)
A("s_add_u32 s%d, s%d, s13" % (TB, TB))
A("s_and_b32 s%d, s%d, 1" % (CB, XCD))
A("s_lshl_b32 s%d, s%d, 2" % (CB, CB))
A("s_bfe_u32 s13, s%d, 0x20002" % SLOT)
A("s_add_u32 s%d, s%d, s13" % (CB, CB))
WOS = 16
A("s_mul_i32 s%d, s%d, 36" % (WOS, CB))
A("s_mul_i32 s13, s%d, 9" % WAVE)
A("s_add_u32 s%d, s%d, s13" % (WOS, WOS))
A("s_mul_i32 s%d, s%d, 9216" % (WOS, WOS))
A("s_add_u32 s%d, s%d, %d" % (WOS, WOS, WOP))
A("v_min_u32 v252, 5, v2")
A("v_cmp_lt_u32 vcc, 2, v252")
A("v_subrev_u32 v253, 3, v252")
A("v_cndmask_b32 v252, v252, v253, vcc")
A("v_mul_u32_u24 v252, 9, v252")
A("v_addc_co_u32 v252, vcc, 0, v252, vcc")
A("v_lshlrev_b32 v252, 7, v252")
A("s_mul_i32 s13, s%d, 9" % WAVE)
A("s_lshr_b32 s13, s13, 2")
A("s_mul_i32 s13, s13, 9")
A("s_mul_i32 s17, s%d, 144" % CB)
A("s_lshr_b32 s17, s17, 7")
A("s_add_u32 s17, s17, s13")
A("s_lshl_b32 s17, s17, 7")
A("s_add_u32 s17, s17, %d" % FW)
def wo_reg(f):
    if f < 32: return a(128 + 4 * f, 4)
    if f < 78: return v(16 + 4 * (f - 32), 4)
    return a(4 * (f - 78), 4)
def wo_load(f):
    l = []
    if f and f % 4 == 0: l.append("s_add_u32 s%d, s%d, 4096" % (WOS, WOS))
    l.append("buffer_load_dwordx4 %s, v5, %s, s%d offen offset:%d sc1" % (wo_reg(f), s(SWP, 4), WOS, (f % 4) * 1024))
    return l

for k in range(9):
    loads = []
    if k + DX < 9:
        for m in range(4): loads.append((([xaddr(k + DX)] if m == 0 else []) + [xload(k + DX, m)], ("X", k + DX)))
    kw = k - 1 + DW
    if k >= 1 and kw < 9:
        for r in range(8): loads.append((([waddr(kw)] if r == 0 else []) + [wload(kw, r)], ("W", kw)))
    if k == 6:
        A("s_cmp_ge_u32 s%d, 16" % SLOT)
        A("s_cbranch_scc1 L_nowoflag")
        poll(252, 253, "s17")
        A("L_nowoflag:")
    if k >= 6:
        lo, hi = [(0, 10), (10, 21), (21, 32)][k - 6]
        for f in range(lo, hi): loads.append((wo_load(f), ("O", f)))
    if k + 1 < 9:
        for l in readAB(k + 1): A(l)
    w = wait_for(("W", k))
    if w: A(w)
    for l in perm_ops(k, 0): A(l)
    for l in perm_ops(k, 1): A(l)
    fill = mod_ops(k + 1) if k + 1 < 9 else []
    first_fill = True
    fi = 0; li = 0
    for j in range(8):
        pj = perm_ops(k, j + 2) if j + 2 < 8 else []
        for m in range(4):
            A(mfma(k, j, m))
            if pj: A(pj[m])
            n = 4 * j + m
            if li < len(loads) and li * 30 <= n * len(loads):
                for l in loads[li][0]: A(l)
                order.append(loads[li][1]); li += 1
            nf = 2 if j >= 1 else 0
            if j >= 6: nf = 3
            for _ in range(nf):
                if fi < len(fill):
                    if first_fill:
                        A(wait_for(("X", k + 1)))
                        A("s_waitcnt lgkmcnt(0)")
                        first_fill = False
                    A(fill[fi]); fi += 1
    while li < len(loads):
        for l in loads[li][0]: A(l)
        order.append(loads[li][1]); li += 1
    while fi < len(fill):
        A(fill[fi]); fi += 1
stamp(7)
for m in range(1, 4):
    A("s_add_u32 s13, s%d, %d" % (WAVE, m))
    A("s_and_b32 s13, s13, 3")
    A("s_mul_i32 s13, s13, 24576")
    A("s_add_u32 s13, s13, %d" % (L_RED + (m - 1) * 8192))
    A("v_add_u32 v%d, s13, v5" % (8 + m))
for m in range(1, 4):
    for j in range(8):
        A("ds_write_b128 v%d, %s offset:%d" % (8 + m, a(16 * j + 4 * m, 4), j * 1024))
R0 = 200
for j in range(8):
    for r in range(4): A("v_accvgpr_read_b32 v%d, a%d" % (R0 + 4 * j + r, 16 * j + r))
A("s_mul_i32 s13, s%d, 24576" % WAVE)
A("s_add_u32 s13, s13, %d" % L_RED)
A("v_add_u32 v12, s13, v5")
div9(18, 19, NT)
A("s_lshl_b32 s18, s18, 5")
A("s_lshl_b32 s13, s%d, 2" % MT)
A("s_add_u32 s18, s18, s13")
A("s_add_u32 s18, s18, s%d" % WAVE)
A("s_mul_i32 s18, s18, 36")
A("s_lshl_b32 s19, s19, 2")
A("s_add_u32 s18, s18, s19")
A("s_lshl_b32 s18, s18, 10")
A("s_add_u32 s18, s18, %d" % QKV)
A("s_mul_i32 s19, s%d, 27" % MT)
A("s_add_u32 s19, s19, s%d" % NT)
A("s_lshl_b32 s19, s19, 7")
A("s_add_u32 s19, s19, %d" % FQ)
A("s_waitcnt lgkmcnt(0)")
A("s_barrier")
RD = 100
for sl in range(3):
    for j in range(8):
        A("ds_read_b128 %s, v12 offset:%d" % (v(RD + 32 * sl + 4 * j, 4), sl * 8192 + j * 1024))
for sl in range(3):
    for j in range(8):
        rem = 24 - (sl * 8 + j + 1)
        A("s_waitcnt lgkmcnt(%d)" % min(rem, 15))
        for r in range(4):
            A("v_add_f32 v%d, v%d, v%d" % (R0 + 4 * j + r, R0 + 4 * j + r, RD + 32 * sl + 4 * j + r))
O = 232
for f in range(4):
    for q in range(4):
        A("v_cvt_pk_bf16_f32 v%d, v%d, v%d" % (O + 4 * f + q, R0 + 4 * (2 * q) + f, R0 + 4 * (2 * q + 1) + f))
    A("buffer_store_dwordx4 %s, v5, %s, s18 offen offset:%d sc1" % (v(O + 4 * f, 4), s(SWS, 4), f * 1024))
NEARLY = 6
for f in range(32, 32 + NEARLY):
    for l in wo_load(f): A(l)
A("s_waitcnt vmcnt(%d)" % NEARLY)
A("s_barrier")
set_flag("s19", 252, 253)
stamp(8)
A("s_cmp_ge_u32 s%d, 16" % SLOT)
A("s_cbranch_scc1 L_phase3_s")
for f in range(32 + NEARLY, 81):
    for l in wo_load(f): A(l)
A("v_min_u32 v252, 2, v2")
A("v_lshlrev_b32 v252, 7, v252")
A("s_lshr_b32 s13, s%d, 1" % TB)
A("s_mul_i32 s13, s13, 27")
A("s_mul_i32 s17, s%d, 9" % WAVE)
A("s_lshr_b32 s18, s17, 2")
A("s_add_u32 s13, s13, s18")
A("s_lshl_b32 s13, s13, 7")
A("s_add_u32 s13, s13, %d" % (FQ + 18 * 128))
A("s_lshl_b32 s18, s%d, 1" % TB)
A("s_mul_i32 s18, s18, 36")
A("s_add_u32 s18, s18, s17")
A("s_lshl_b32 s18, s18, 10")
A("s_add_u32 s18, s18, %d" % (QKV + 64 * 36 * 1024))
A("s_add_u32 s19, s18, %d" % (36 * 1024))
A("v_add_u32 v6, 0x1000, v5")
A("v_add_u32 v7, 0x2000, v5")
poll(252, 253, "s13")
stamp(9)
def vfrag(k, m): return a(12 + 8 * k + 4 * m, 4)
def vacc(m, ct):
    i = 9 * m + ct
    return a(84 + 4 * i, 4) if i < 11 else v(200 + 4 * (i - 11), 4)
for k in range(9):
    for m in range(2):
        A("buffer_load_dwordx4 %s, v%d, %s, s%d offen offset:%d sc1" % (vfrag(k, m), 5 + k // 4, s(SWS, 4), 18 + m, (k % 4) * 1024))
A("s_mul_i32 s13, s%d, 18432" % WAVE)
A("s_add_u32 s13, s13, %d" % L_RED)
A("v_add_u32 v8, s13, v5")
A("s_lshl_b32 s13, s%d, 11" % WAVE)
A("s_add_u32 s13, s13, %d" % L_RED)
A("v_add_u32 v9, s13, v5")
A("v_add_u32 v10, %d, v9" % 36864)
for k in range(9):
    for m in range(2):
        A("s_waitcnt vmcnt(%d)" % (17 - 2 * k - m))
        for ct in range(9):
            A("v_mfma_f32_16x16x32_bf16 %s, %s, %s, %s" % (vacc(m, ct), vfrag(k, m), wo_reg(9 * k + ct), "0" if k == 0 else vacc(m, ct)))
for ct in range(9):
    for m in range(2):
        A("ds_write_b128 v8, %s offset:%d" % (vacc(m, ct), ct * 2048 + m * 1024))
A("s_lshl_b32 s13, s%d, 3" % TB)
A("s_add_u32 s13, s13, s%d" % CB)
A("s_lshl_b32 s19, s13, 7")
A("s_add_u32 s19, s19, %d" % FV)
A("s_mul_i32 s18, s13, 9")
A("s_add_u32 s18, s18, s%d" % WAVE)
A("s_lshl_b32 s18, s18, 10")
A("s_add_u32 s18, s18, %d" % VT)
A("s_waitcnt lgkmcnt(0)")
A("s_barrier")
for u in range(3):
    if u == 2:
        A("s_cmp_lg_u32 s%d, 0" % WAVE)
        A("s_cbranch_scc1 L_v_red_done")
    base = 16 + 32 * u
    for sw in range(4):
        for m in range(2):
            A("ds_read_b128 %s, v%d offset:%d" % (v(base + 8 * sw + 4 * m, 4), 9 + (sw >> 1), (sw & 1) * 18432 + u * 8192 + m * 1024))
    if u == 0: continue
    for uu in ([0, 1] if u == 1 else [2]):
        b2 = 16 + 32 * uu
        A("s_waitcnt lgkmcnt(%d)" % (8 if uu == 0 else 0))
        for e in range(8):
            A("v_add_f32 v%d, v%d, v%d" % (b2 + e, b2 + e, b2 + 8 + e))
            A("v_add_f32 v%d, v%d, v%d" % (b2 + 16 + e, b2 + 16 + e, b2 + 24 + e))
        for e in range(8): A("v_add_f32 v%d, v%d, v%d" % (b2 + e, b2 + e, b2 + 16 + e))
        for q in range(4): A("v_cvt_pk_bf16_f32 v%d, v%d, v%d" % (120 + 4 * uu + q, b2 + 2 * q, b2 + 2 * q + 1))
        A("buffer_store_dwordx4 %s, v%d, %s, s18 offen sc1" % (v(120 + 4 * uu, 4), 5 + uu, s(SWS, 4)))
A("L_v_red_done:")
A("s_branch L_phase3_done")

A("L_aux:")
A.srd(SWO, 10, 1152 * 2304)
A.srd(SOUT, 14, 512 * 2304)
AUX = 60
A("s_sub_u32 s13, s%d, s63" % SLOT)
A("s_lshl_b32 s14, s%d, 2" % XCD)
A("s_lshl_b32 s15, s%d, 3" % XCD)
A("s_sub_u32 s15, s15, 24")
A("s_cmp_lt_u32 s%d, 6" % XCD)
A("s_cselect_b32 s14, s14, s15")
A("s_add_u32 s%d, s13, s14" % AUX)
A("s_cmp_ge_u32 s%d, 32" % AUX)
A("s_cbranch_scc1 L_noln")
A("v_mul_u32_u24 v6, 2304, v3")
A("v_lshl_add_u32 v6, v4, 4, v6")
A("s_mul_i32 s13, s%d, %d" % (AUX, 16 * 2304))
A("s_mul_i32 s14, s%d, 576" % WAVE)
A("s_add_u32 s13, s13, s14")
for j in range(9):
    A("buffer_load_dwordx4 %s, v6, %s, s13 offen offset:%d" % (v(12 + 4 * j, 4), s(SX, 4), 64 * j))
A("v_lshrrev_b32 v7, 4, v0")
A("v_lshlrev_b32 v7, 2, v7")
A("v_lshl_add_u32 v7, v3, 6, v7")
A("v_lshlrev_b32 v8, 6, v3")
X = 50
A("v_mov_b32 v130, 0")
A("v_mov_b32 v131, 0")
for j in range(9):
    A("s_waitcnt vmcnt(%d)" % (8 - j))
    for q in range(4):
        A("v_lshlrev_b32 v%d, 16, v%d" % (X + 8 * j + 2 * q, 12 + 4 * j + q))
        A("v_and_b32 v%d, s%d, v%d" % (X + 8 * j + 2 * q + 1, MASK, 12 + 4 * j + q))
        A("v_add_f32 v130, v130, v%d" % (X + 8 * j + 2 * q))
        A("v_add_f32 v131, v131, v%d" % (X + 8 * j + 2 * q + 1))
stamp(1)
def xreduce(off):
    A("v_add_f32 v130, v130, v131")
    A("ds_write_b32 v7, v130 offset:%d" % off)
    A("s_waitcnt lgkmcnt(0)")
    A("s_barrier")
    for q in range(4): A("ds_read_b128 %s, v8 offset:%d" % (v(132 + 4 * q, 4), off + 16 * q))
    A("s_waitcnt lgkmcnt(0)")
    for st in (8, 4, 2, 1):
        for p in range(st): A("v_add_f32 v%d, v%d, v%d" % (132 + p, 132 + p, 132 + p + st))
xreduce(0)
A("s_mov_b32 s15, 0x3a638e39")
A("v_mul_f32 v150, s15, v132")
A("v_mov_b32 v130, 0")
A("v_mov_b32 v131, 0")
for i in range(72):
    A("v_sub_f32 v%d, v%d, v150" % (X + i, X + i))
    A("v_fmac_f32 v%d, v%d, v%d" % (130 + (i & 1), X + i, X + i))
xreduce(1024)
A("v_mul_f32 v151, s15, v132")
bf16_round("v151", "v151")
A("v_add_f32 v151, 0x3727c5ac, v151")
bf16_round("v151", "v151")
A("v_sqrt_f32 v151, v151")
bf16_round("v151", "v151")
A("v_rcp_f32 v151, v151")
bf16_round("v152", "v150")
A("v_sub_f32 v152, v150, v152")
A("v_mul_f32 v152, v152, v151")
A("s_mul_i32 s13, s%d, 36" % AUX)
A("s_mul_i32 s14, s%d, 9" % WAVE)
A("s_add_u32 s13, s13, s14")
A("s_lshl_b32 s13, s13, 10")
for j in range(9):
    for q in range(4):
        i = 8 * j + 2 * q
        A("v_fma_f32 v%d, v%d, v151, v152" % (X + i, X + i))
        A("v_fma_f32 v%d, v%d, v151, v152" % (X + i + 1, X + i + 1))
        A("v_cvt_pk_f16_f32 v%d, v%d, v%d" % (12 + 4 * j + q, X + i, X + i + 1))
    if j and j % 4 == 0: A("s_add_u32 s13, s13, 4096")
    A("buffer_store_dwordx4 %s, v5, %s, s13 offen offset:%d sc1" % (v(12 + 4 * j, 4), s(SWS, 4), (j % 4) * 1024))
stamp(2)
get_nonce(9, 10)
A("s_barrier")
A("s_lshl_b32 s13, s%d, 7" % AUX)
A("s_add_u32 s13, s13, %d" % FX)
set_flag("s13", 9, 10)
A("s_branch L_pack")
A("L_noln:")
get_nonce(9, 10)
A("L_pack:")
stamp(3)
A("v_mul_u32_u24 v6, %d, v4" % (32 * 2304))
A("v_lshl_add_u32 v6, v3, 4, v6")
A("s_mul_i32 s13, s%d, %d" % (WAVE, 8 * 2304))
A("v_add_u32 v6, s13, v6")
A("v_lshrrev_b32 v7, 1, v3")
A("v_lshlrev_b32 v7, 10, v7")
A("v_and_b32 v8, 1, v3")
A("v_lshl_add_u32 v7, v8, 7, v7")
A("v_lshl_add_u32 v7, v4, 8, v7")
A("s_mul_i32 s13, s%d, 24576" % WAVE)
A("s_add_u32 s13, s13, %d" % L_RED)
A("v_add_u32 v7, s13, v7")
A("v_add_u32 v8, s13, v5")
UN = 68
for u in range(3):
    if u < 2: A("s_add_u32 s%d, s%d, %d" % (UN + u, AUX, 40 * u))
    else: A("s_mov_b32 s%d, 80" % (UN + u))
    div9(72 + u, 76 + u, UN + u)
    A("s_mul_i32 s13, s%d, %d" % (72 + u, 128 * 2304))
    A("s_lshl_b32 s14, s%d, 8" % (76 + u))
    A("s_add_u32 s13, s13, s14")
    if u == 2:
        A("s_cmp_lg_u32 s%d, 39" % AUX)
        A("s_cbranch_scc1 L_pack_l2")
    for p in range(8):
        A("buffer_load_dwordx4 %s, v6, %s, s13 offen nt" % (v(12 + 32 * u + 4 * p, 4), s(SWO, 4)))
        if p < 7: A("s_add_u32 s13, s13, 2304")
A("L_pack_l2:")
A("s_waitcnt vmcnt(0)")
for u in range(3):
    if u == 2:
        A("s_cmp_lg_u32 s%d, 39" % AUX)
        A("s_cbranch_scc1 L_pack_done")
    base = 12 + 32 * u
    for j in range(8):
        fb = 120 + 4 * j
        for q in range(4):
            A("v_perm_b32 v%d, v%d, v%d, s%d" % (fb + q, base + 4 * (2 * q + 1) + (j >> 1), base + 4 * (2 * q) + (j >> 1), PLO + (j & 1)))
        A("ds_write_b128 v7, %s offset:%d" % (v(fb, 4), u * 8192 + j * 16))
    A("s_waitcnt lgkmcnt(0)")
    for c in range(8): A("ds_read_b128 %s, v8 offset:%d" % (v(160 + 4 * c, 4), u * 8192 + c * 1024))
    A("s_lshl_b32 s4, s%d, 2" % (72 + u))
    A("s_add_u32 s4, s4, s%d" % WAVE)
    for c in range(8):
        A("s_lshl_b32 s5, s%d, 3" % (76 + u))
        A("s_add_u32 s5, s5, %d" % c)
        div9(6, 7, 5)
        A("s_mul_i32 s6, s6, 36")
        A("s_add_u32 s6, s6, s4")
        A("s_mul_i32 s6, s6, 9")
        A("s_add_u32 s6, s6, s7")
        A("s_lshl_b32 s6, s6, 10")
        A("s_add_u32 s6, s6, %d" % WOP)
        A("s_waitcnt lgkmcnt(%d)" % (7 - c))
        A("buffer_store_dwordx4 %s, v5, %s, s6 offen sc1" % (v(160 + 4 * c, 4), s(SWS, 4)))
    A("s_nop 1")
A("L_pack_done:")
A("s_waitcnt vmcnt(0)")
A("s_barrier")
for u in range(3):
    if u == 2:
        A("s_cmp_lg_u32 s%d, 39" % AUX)
        A("s_cbranch_scc1 L_pack_flags_done")
    A("s_lshl_b32 s13, s%d, 7" % (UN + u))
    A("s_add_u32 s13, s13, %d" % FW)
    set_flag("s13", 9, 10)
A("L_pack_flags_done:")
stamp(4)

A("L_phase3_s:")
QB, KB, BT = 4, 5, 6
A("s_lshr_b32 s%d, s%d, 2" % (BT, XCD))
A("s_and_b32 s%d, s%d, 1" % (QB, XCD))
A("s_lshl_b32 s%d, s%d, 2" % (QB, QB))
A("s_and_b32 s13, s%d, 3" % SLOT)
A("s_add_u32 s%d, s%d, s13" % (QB, QB))
A("s_bfe_u32 s%d, s%d, 0x10001" % (KB, XCD))
A("s_lshl_b32 s%d, s%d, 2" % (KB, KB))
A("s_bfe_u32 s13, s%d, 0x20002" % SLOT)
A("s_add_u32 s%d, s%d, s13" % (KB, KB))
A("s_mul_i32 s17, s%d, 9" % WAVE)
A("s_lshr_b32 s18, s17, 2")
A("s_lshl_b32 s7, s%d, 2" % BT)
A("s_lshr_b32 s8, s%d, 1" % QB)
A("s_add_u32 s8, s8, s7")
A("s_mul_i32 s8, s8, 27")
A("s_add_u32 s8, s8, s18")
A("s_lshr_b32 s9, s%d, 1" % KB)
A("s_add_u32 s9, s9, s7")
A("s_mul_i32 s9, s9, 27")
A("s_add_u32 s9, s9, s18")
A("s_add_u32 s9, s9, 6")
A("v_min_u32 v252, 5, v2")
A("v_mov_b32 v253, s8")
A("v_mov_b32 v254, s9")
A("v_cmp_gt_u32 vcc, 3, v252")
A("v_cndmask_b32 v253, v254, v253, vcc")
A("v_add_u32 v252, v252, v253")
A("v_lshlrev_b32 v252, 7, v252")
A("s_mov_b32 s13, %d" % FQ)
A("s_lshl_b32 s7, s%d, 4" % BT)
A("s_lshl_b32 s8, s%d, 1" % QB)
A("s_add_u32 s8, s8, s7")
A("s_mov_b32 s12, s8")
A("s_mul_i32 s8, s8, 36")
A("s_add_u32 s8, s8, s17")
A("s_lshl_b32 s8, s8, 10")
A("s_add_u32 s8, s8, %d" % QKV)
A("s_add_u32 s9, s8, %d" % (36 * 1024))
A("s_lshl_b32 s10, s%d, 1" % KB)
A("s_add_u32 s10, s10, s7")
A("s_mul_i32 s10, s10, 36")
A("s_add_u32 s10, s10, s17")
A("s_lshl_b32 s10, s10, 10")
A("s_add_u32 s10, s10, %d" % (QKV + 32 * 36 * 1024))
A("s_add_u32 s11, s10, %d" % (36 * 1024))
A("v_add_u32 v6, 0x1000, v5")
A("v_add_u32 v7, 0x2000, v5")
poll(252, 253, "s13")
stamp(9)
SB = 16
for k in range(9):
    for t in range(4):
        A("buffer_load_dwordx4 %s, v%d, %s, s%d offen offset:%d sc1" % (v(SB + 16 * k + 4 * t, 4), 5 + k // 4, s(SWS, 4), 8 + t, (k % 4) * 1024))
A("s_lshl_b32 s13, s%d, 12" % WAVE)
A("s_add_u32 s13, s13, %d" % L_RED)
A("v_add_u32 v8, s13, v5")
A("s_and_b32 s13, s%d, 1" % WAVE)
A("s_lshl_b32 s13, s13, 11")
A("s_add_u32 s13, s13, %d" % L_RED)
A("v_add_u32 v9, s13, v5")
SA = 170
for k in range(9):
    for m in range(2):
        A("s_waitcnt vmcnt(%d)" % (36 - 4 * k - 3 - m))
        for c in range(2):
            acc = v(SA + 8 * c + 4 * m, 4)
            A("v_mfma_f32_16x16x32_bf16 %s, %s, %s, %s" % (acc, v(SB + 16 * k + 8 + 4 * m, 4), v(SB + 16 * k + 4 * c, 4), "0" if k == 0 else acc))
for i in range(4): A("ds_write_b128 v8, %s offset:%d" % (v(SA + 4 * i, 4), i * 1024))
A("s_add_u32 s12, s12, s%d" % WAVE)
A("s_lshl_b32 s12, s12, 3")
A("s_add_u32 s12, s12, s%d" % KB)
A("s_lshl_b32 s18, s12, 10")
A("s_add_u32 s18, s18, %d" % PF)
A("s_lshl_b32 s17, s12, 6")
A("s_add_u32 s17, s17, %d" % MS)
A("s_lshl_b32 s19, s%d, 3" % BT)
A("s_add_u32 s19, s19, s%d" % QB)
A("s_lshl_b32 s19, s19, 3")
A("s_add_u32 s19, s19, s%d" % KB)
A("s_lshl_b32 s19, s19, 7")
A("s_add_u32 s19, s19, %d" % FP)
cs = struct.unpack("<I", struct.pack("<f", math.log2(math.e) * 1152 ** -0.5))[0]
A("s_mov_b32 s13, 0x%08x" % cs)
A("s_waitcnt lgkmcnt(0)")
A("s_barrier")
A("s_cmp_ge_u32 s%d, 2" % WAVE)
A("s_cbranch_scc1 L_phase3_done")
for sw in range(4):
    for m in range(2):
        A("ds_read_b128 %s, v9 offset:%d" % (v(16 + 8 * sw + 4 * m, 4), sw * 4096 + m * 1024))
A("s_waitcnt lgkmcnt(0)")
for e in range(8):
    A("v_add_f32 v%d, v%d, v%d" % (16 + e, 16 + e, 24 + e))
    A("v_add_f32 v%d, v%d, v%d" % (32 + e, 32 + e, 40 + e))
for e in range(8): A("v_add_f32 v%d, v%d, v%d" % (16 + e, 16 + e, 32 + e))
A("v_max3_f32 v50, v16, v17, v18")
A("v_max3_f32 v51, v19, v20, v21")
A("v_max3_f32 v50, v50, v22, v23")
A("v_max_f32 v50, v50, v51")
A("v_mov_b32 v51, v50")
A("v_permlane16_swap_b32 v50, v51")
A("v_max_f32 v50, v50, v51")
A("v_mov_b32 v51, v50")
A("v_permlane32_swap_b32 v50, v51")
A("v_max_f32 v50, v50, v51")
A("v_mul_f32 v50, s13, v50")
for i in range(8): A("v_fma_f32 v%d, v%d, s13, -v50" % (16 + i, 16 + i))
for i in range(8): A("v_exp_f32 v%d, v%d" % (16 + i, 16 + i))
for q in range(4): A("v_cvt_pk_bf16_f32 v%d, v%d, v%d" % (52 + q, 16 + 2 * q, 17 + 2 * q))
A("buffer_store_dwordx4 v[52:55], v5, %s, s18 offen sc1" % s(SWS, 4))
A("v_lshlrev_b32 v10, 2, v2")
A("v_cmp_gt_u32 vcc, 16, v2")
A("s_and_saveexec_b64 s[14:15], vcc")
A("buffer_store_dword v50, v10, %s, s17 offen sc1" % s(SWS, 4))
A("s_mov_b64 exec, s[14:15]")
A("L_phase3_done:")
A("s_waitcnt vmcnt(0)")
A("s_barrier")
set_flag("s19", 252, 253)
stamp(10)
A("s_cmp_eq_u32 s%d, 3" % WAVE)
A("s_cbranch_scc1 L_end")
TT, CK = 4, 5
A("s_lshr_b32 s%d, s%d, 2" % (BT, XCD))
A("s_lshl_b32 s%d, s%d, 4" % (TT, BT))
A("s_and_b32 s13, s%d, 15" % SLOT)
A("s_add_u32 s%d, s%d, s13" % (TT, TT))
A("s_and_b32 s%d, s%d, 3" % (CK, XCD))
A("s_lshl_b32 s%d, s%d, 1" % (CK, CK))
A("s_lshr_b32 s13, s%d, 4" % SLOT)
A("s_add_u32 s%d, s%d, s13" % (CK, CK))
A("s_mul_i32 s7, s%d, 3" % CK)
A("s_add_u32 s7, s7, s%d" % WAVE)
A("v_mul_u32_u24 v8, 2304, v3")
A("v_lshl_add_u32 v8, v4, 3, v8")
A("s_mul_i32 s8, s%d, %d" % (TT, 16 * 2304))
A("s_mul_i32 s13, s7, 96")
A("s_add_u32 s8, s8, s13")
for c in range(3):
    A("buffer_load_dwordx2 %s, v8, %s, s8 offen offset:%d" % (v(12 + 2 * c, 2), s(SX, 4), 32 * c))
GP = 20
A("v_lshlrev_b32 v9, 4, v4")
A("s_mul_i32 s9, s%d, %d" % (BT, 4 * 13824))
A("s_mul_i32 s13, s7, 192")
A("s_add_u32 s9, s9, s13")
A("s_add_u32 s9, s9, %d" % (PART + 9216))
for kq in range(1, 4): A("s_add_u32 s%d, s9, %d" % (9 + kq, kq * 13824))
A("s_lshr_b32 s17, s%d, 8" % NONCE)
A("s_lshr_b32 s18, s%d, 16" % NONCE)
A("s_lshr_b32 s19, s%d, 24" % NONCE)
A("s_mov_b32 s%d, 0" % CNT)
A("L_gate:")
for kq in range(4):
    for c in range(3):
        A("buffer_load_dwordx4 %s, v9, %s, s%d offen offset:%d sc0 sc1" % (v(GP + 12 * kq + 4 * c, 4), s(SWS, 4), 9 + kq, 64 * c))
A("s_waitcnt vmcnt(0)")
A("v_xor_b32 v255, s%d, v%d" % (tg[0], GP))
for i in range(1, 48):
    A("v_bitop3_b32 v255, v%d, s%d, v255 bitop3:0xbe" % (GP + i, tg[i & 3]))
A("v_and_b32 v255, 0xff, v255")
A("v_cmp_ne_u32 vcc, 0, v255")
A("s_cbranch_vccz L_gate_ok")
A("s_add_u32 s%d, s%d, 1" % (CNT, CNT))
A("s_cmp_lt_u32 s%d, %d" % (CNT, POLL_LIMIT))
A("s_cbranch_scc1 L_gate")
A("L_gate_ok:")
A("s_movk_i32 s63, 0xff00")
for i in range(48): A("v_and_b32 v%d, s63, v%d" % (GP + i, GP + i))
for i in range(12):
    A("v_add_f32 v%d, v%d, v%d" % (GP + i, GP + i, GP + 12 + i))
    A("v_add_f32 v%d, v%d, v%d" % (GP + 24 + i, GP + 24 + i, GP + 36 + i))
    A("v_add_f32 v%d, v%d, v%d" % (GP + i, GP + i, GP + 24 + i))
    bf16_round("v%d" % (GP + i), "v%d" % (GP + i))
A("s_lshr_b32 s13, s%d, 1" % TT)
A("s_lshl_b32 s13, s13, 10")
A("s_add_u32 s13, s13, %d" % FP)
A("s_lshl_b32 s14, s%d, 6" % BT)
A("s_add_u32 s14, s14, s%d" % CK)
A("s_lshl_b32 s14, s14, 7")
A("s_add_u32 s14, s14, %d" % FV)
A("v_and_b32 v252, 7, v2")
A("v_lshl_add_u32 v253, v252, 7, s13")
A("v_lshl_add_u32 v254, v252, 10, s14")
A("v_and_b32 v252, 8, v2")
A("v_cmp_eq_u32 vcc, 0, v252")
A("v_cndmask_b32 v252, v254, v253, vcc")
A("s_lshl_b32 s9, s%d, 13" % TT)
A("s_add_u32 s9, s9, %d" % PF)
A("s_lshl_b32 s10, s%d, 9" % TT)
A("s_add_u32 s10, s10, %d" % MS)
A("s_lshl_b32 s11, s%d, 6" % BT)
A("s_add_u32 s11, s11, s%d" % CK)
A("s_mul_i32 s11, s11, 9")
A("s_mul_i32 s13, s%d, 3" % WAVE)
A("s_add_u32 s11, s11, s13")
A("s_lshl_b32 s11, s11, 10")
A("s_add_u32 s11, s11, %d" % VT)
A("v_lshlrev_b32 v10, 2, v3")
A("v_add_u32 v6, 0x1000, v5")
ONES = 36
for q in range(4): A("v_mov_b32 v%d, 0x3f803f80" % (ONES + q))
poll(252, 253)
if STAMPS:
    A("s_memrealtime s[68:69]")
    A("s_waitcnt lgkmcnt(0)")
MR = 40
PB = 48
for k in range(8): A("buffer_load_dword v%d, v10, %s, s10 offen offset:%d sc1" % (MR + k, s(SWS, 4), 64 * k))
def vp(k, c): return a(12 * k + 4 * c, 4)
for k in range(8):
    A("buffer_load_dwordx4 %s, v%d, %s, s9 offen offset:%d sc1" % (v(PB + 4 * k, 4), 5 + k // 4, s(SWS, 4), (k % 4) * 1024))
    for c in range(3):
        A("buffer_load_dwordx4 %s, v5, %s, s11 offen offset:%d sc1" % (vp(k, c), s(SWS, 4), c * 1024))
    if k < 7: A("s_add_u32 s11, s11, 73728")
A("s_waitcnt vmcnt(32)")
A("v_max3_f32 v32, v40, v41, v42")
A("v_max3_f32 v33, v43, v44, v45")
A("v_max3_f32 v32, v32, v46, v47")
A("v_max_f32 v32, v32, v33")
for k in range(8): A("v_sub_f32 v%d, v%d, v32" % (MR + k, MR + k))
for k in range(8): A("v_exp_f32 v%d, v%d" % (MR + k, MR + k))
ACC = 80
OA = 210
def combine(k):
    for i in range(13):
        if k == 0: A("v_mul_f32 v%d, v%d, v%d" % (OA + i, MR, ACC + i))
        else: A("v_fmac_f32 v%d, v%d, v%d" % (OA + i, MR + k, ACC + 16 * k + i))
for k in range(8):
    A("s_waitcnt vmcnt(%d)" % (32 - 4 * k - 1))
    A("v_mfma_f32_16x16x32_bf16 %s, %s, %s, 0" % (v(ACC + 16 * k + 12, 4), v(ONES, 4), v(PB + 4 * k, 4)))
    for c in range(3):
        A("s_waitcnt vmcnt(%d)" % (32 - 4 * k - 2 - c))
        A("v_mfma_f32_16x16x32_bf16 %s, %s, %s, 0" % (v(ACC + 16 * k + 4 * c, 4), vp(k, c), v(PB + 4 * k, 4)))
    if k >= 1: combine(k - 1)
combine(7)
A("v_rcp_f32 v%d, v%d" % (OA + 12, OA + 12))
for c in range(3):
    for r in range(4):
        i = 4 * c + r
        A("v_mul_f32 v%d, v%d, v%d" % (OA + i, OA + i, OA + 12))
        src = 12 + 2 * c + (r >> 1)
        if r & 1: A("v_and_b32 v34, s%d, v%d" % (MASK, src))
        else: A("v_lshlrev_b32 v34, 16, v%d" % src)
        A("v_fma_f32 v%d, v%d, v%d, v34" % (OA + i, OA + i, GP + i))
    A("v_cvt_pk_bf16_f32 v%d, v%d, v%d" % (230 + 2 * c, OA + 4 * c, OA + 4 * c + 1))
    A("v_cvt_pk_bf16_f32 v%d, v%d, v%d" % (231 + 2 * c, OA + 4 * c + 2, OA + 4 * c + 3))
    A("buffer_store_dwordx2 %s, v8, %s, s8 offen offset:%d" % (v(230 + 2 * c, 2), s(SOUT, 4), 32 * c))
if STAMPS:
    A("s_waitcnt vmcnt(0)")
    A("s_memrealtime s[4:5]")
    A("s_waitcnt lgkmcnt(0)")
    dump_stamps()
    A("v_mov_b32 v250, s4")
    A("v_mov_b32 v251, s5")
    A("v_cmp_eq_u32 vcc, 0, v0")
    A("s_and_saveexec_b64 s[16:17], vcc")
    A("buffer_store_dwordx2 v[250:251], v252, %s, s14 offen offset:96" % s(SWS, 4))
    A("v_mov_b32 v250, s68")
    A("v_mov_b32 v251, s69")
    A("buffer_store_dwordx2 v[250:251], v252, %s, s14 offen offset:88" % s(SWS, 4))
    A("s_mov_b64 exec, s[16:17]")
A("L_end:")
A("s_endpgm")
A.end_kernel(NAME, 256, accum=256, agpr=256)
A.lines = [l for l in A.lines if l is not None]
A.lines = hazard.fix(A.lines, verbose=True)
A.launches.append("; @launch grid=(256,1,1) block=(256,1,1) lds=%d" % LDS_BYTES)
open(OUT, "w").write(A.text(HEADER))
```

```python
import sys, struct, math
sys.path.insert(0, "tools")
from asmlib import *
import hazard

DBGST = "--dbgst" in sys.argv
STAMPS = "--stamps" in sys.argv or DBGST
OUT = [x for x in sys.argv[1:] if not x.startswith("--")]
OUT = OUT[0] if OUT else "standalone__dit_adaln_block__diffusion.s"
NAME = "standalone__dit_adaln_block__diffusion_kernel"

XH = 0x0
PART = 0x120000
QKV = 0x140000
WOP = 0x4A0000
VT = 0x728000
PF = 0x848000
MS = 0x888000
FLG = 0x890000
FQ = FLG
FX = FQ + 216 * 128
FW = FX + 32 * 128
FP = FW + 81 * 128
FV = FP + 128 * 128
WS_USED = FV + 128 * 128
WS_BYTES = 268435456
WSN = WS_BYTES if (STAMPS and not DBGST) else WS_USED
NST = 16
POLL_LIMIT = 1 << 17

L_AB = 0
L_RED = 12288
L_SI = 110592
L_GR = 112640
LDS_BYTES = 120832

SX, SC, SWQ, SWO, SWM, SOUT, SDBG, SWS, SWP = 20, 24, 28, 32, 36, 40, 44, 48, 52
WAVE, XCD, SLOT, NONCE, LIN, NT, MT = 56, 57, 58, 59, 60, 61, 62
PLO, PHI, MASK = 64, 65, 66
CNT = 67
A = Asm()
nstamp = [0]
def stamp(i):
    if not STAMPS: return
    A("s_memrealtime s[%d:%d]" % (80 + 2 * i, 81 + 2 * i))
    A("s_waitcnt lgkmcnt(0)")
def dump_stamps(n=11):
    if not STAMPS: return
    A("s_waitcnt vmcnt(0) lgkmcnt(0)")
    A("s_mul_i32 s14, s2, %d" % (NST * 8))
    A("s_add_u32 s14, s14, %d" % (128 << 20))
    A("v_mov_b32 v252, 0")
    A("v_cmp_eq_u32 vcc, 0, v0")
    A("s_and_saveexec_b64 s[16:17], vcc")
    for i in range(n):
        A("v_mov_b32 v250, s%d" % (80 + 2 * i))
        A("v_mov_b32 v251, s%d" % (81 + 2 * i))
        A("buffer_store_dwordx2 v[250:251], v252, %s, s14 offen offset:%d" % (s(SWS, 4), 8 * i))
    A("s_mov_b64 exec, s[16:17]")

def bf16_round(dst, src):
    A("v_cvt_pk_bf16_f32 %s, %s, %s" % (dst, src, src))
    A("v_lshlrev_b32 %s, 16, %s" % (dst, dst))

def poll(vaddr, vtmp, soff="0"):
    L = A.label("poll"); D = A.label("polld")
    A("s_mov_b32 s%d, 0" % CNT)
    A(L + ":")
    A("buffer_load_dword v%d, v%d, %s, %s offen sc0 sc1" % (vtmp, vaddr, s(SWS, 4), soff))
    A("s_waitcnt vmcnt(0)")
    A("v_cmp_ne_u32 vcc, s%d, v%d" % (NONCE, vtmp))
    A("s_cbranch_vccz " + D)
    A("s_add_u32 s%d, s%d, 1" % (CNT, CNT))
    A("s_cmp_lt_u32 s%d, %d" % (CNT, POLL_LIMIT))
    A("s_cbranch_scc1 " + L)
    A(D + ":")

def get_nonce(vz, vt):
    L = A.label("nonce"); D = A.label("nonced")
    A("v_mov_b32 v%d, 0" % vz)
    A("s_mov_b32 s%d, 0" % CNT)
    A(L + ":")
    A("buffer_load_dword v%d, v%d, %s, 0 offen sc0 sc1" % (vt, vz, s(SDBG, 4)))
    A("s_waitcnt vmcnt(0)")
    A("v_readfirstlane_b32 s%d, v%d" % (NONCE, vt))
    A("s_cmp_lg_u32 s%d, 0" % NONCE)
    A("s_cbranch_scc1 " + D)
    A("s_add_u32 s%d, s%d, 1" % (CNT, CNT))
    A("s_cmp_lt_u32 s%d, %d" % (CNT, POLL_LIMIT))
    A("s_cbranch_scc1 " + L)
    A(D + ":")

def set_flag(soff, vz, vt):
    A("v_mov_b32 v%d, 0" % vz)
    A("v_mov_b32 v%d, s%d" % (vt, NONCE))
    A("v_cmp_eq_u32 vcc, 0, v0")
    A("s_and_saveexec_b64 s[0:1], vcc")
    A("buffer_store_dword v%d, v%d, %s, %s offen sc0 sc1" % (vt, vz, s(SWS, 4), soff))
    A("s_mov_b64 exec, s[0:1]")

def tag_bytes(base):
    for i in range(4):
        A("s_bfe_u32 s%d, s%d, 0x%x" % (base + i, NONCE, (8 << 16) | (8 * i)))

def div9(dst, rem, src):
    A("s_mul_i32 s%d, s%d, 7282" % (dst, src))
    A("s_lshr_b32 s%d, s%d, 16" % (dst, dst))
    A("s_mul_i32 s%d, s%d, 9" % (rem, dst))
    A("s_sub_u32 s%d, s%d, s%d" % (rem, src, rem))

A.begin_kernel(NAME)
A("s_cmp_ge_u32 s2, 256")
A("s_cbranch_scc1 L_end")
A("s_load_dwordx16 s[4:19], s[0:1], 0")
A("s_memrealtime s[80:81]")
A("v_lshrrev_b32 v1, 6, v0")
A("v_and_b32 v2, 63, v0")
A("v_readfirstlane_b32 s%d, v1" % WAVE)
A("v_and_b32 v3, 15, v2")
A("v_lshrrev_b32 v4, 4, v2")
A("v_lshlrev_b32 v5, 4, v2")
A("s_and_b32 s%d, s2, 7" % XCD)
A("s_lshr_b32 s%d, s2, 3" % SLOT)
A("s_mov_b32 s%d, 0x05040100" % PLO)
A("s_mov_b32 s%d, 0x07060302" % PHI)
A("s_mov_b32 s%d, 0xffff0000" % MASK)
A("s_mul_i32 s%d, s%d, 28" % (LIN, XCD))
A("s_mul_i32 s63, s%d, 24" % XCD)
A("s_add_u32 s63, s63, 24")
A("s_min_u32 s%d, s%d, s63" % (LIN, LIN))
A("s_add_u32 s%d, s%d, s%d" % (LIN, LIN, SLOT))
A("s_lshr_b32 s%d, s%d, 3" % (NT, LIN))
A("s_and_b32 s%d, s%d, 7" % (MT, LIN))
A("s_waitcnt lgkmcnt(0)")
A.srd(SC, 6, 2 * 2304)
A.srd(SWM, 12, 1152 * 13824)
A.srd(SX, 4, 512 * 2304)
A.srd(SDBG, 16, 256)
A.srd(SWS, 18, WSN)
A("s_or_b32 s63, s2, s%d" % WAVE)
A("s_cmp_lg_u32 s63, 0")
A("s_cbranch_scc1 L_nononce")
A("s_or_b32 s63, s80, 1")
A("v_mov_b32 v6, s63")
A("v_mov_b32 v7, 0")
A("buffer_store_dword v6, v7, %s, 0 offen sc0 sc1" % s(SDBG, 4))
A("L_nononce:")
A("s_cmp_lt_u32 s%d, 6" % XCD)
A("s_cselect_b32 s63, 28, 24")
A("s_cmp_ge_u32 s%d, s63" % SLOT)
A("s_cbranch_scc1 L_aux")

GW = 44
GA = 80
GS = 96
A("s_and_b32 s68, s%d, 3" % LIN)
A("s_lshr_b32 s69, s%d, 2" % LIN)
A("s_mul_i32 s70, s68, 576")
A("v_lshlrev_b32 v6, 2, v0")
A("buffer_load_dword v120, v6, %s, s70 offen" % s(SC, 4))
A("buffer_load_dword v121, v6, %s, s70 offen offset:2304" % s(SC, 4))
A("v_lshrrev_b32 v7, 3, v0")
A("v_and_b32 v8, 7, v0")
A("v_mul_u32_u24 v9, 13824, v7")
A("v_lshl_add_u32 v9, v8, 4, v9")
A("s_mul_i32 s71, s68, %d" % (288 * 13824))
A("s_lshl_b32 s72, s69, 7")
A("s_add_u32 s71, s71, s72")
for j in range(9):
    A("buffer_load_dwordx4 %s, v9, %s, s71 offen nt" % (v(GW + 4 * j, 4), s(SWM, 4)))
    if j < 8: A("s_add_u32 s71, s71, %d" % (32 * 13824))
A.srd(SWQ, 8, 1152 * 6912)
A.srd(SOUT, 14, 512 * 2304)
A("s_mov_b32 s%d, s%d" % (SWP, SWS))
A("s_mov_b32 s%d, s%d" % (SWP + 1, SWS + 1))
A("s_cmp_lt_u32 s%d, 16" % SLOT)
A("s_cselect_b32 s%d, s%d, 0" % (SWP + 2, SWS + 2))
A("s_mov_b32 s%d, 0x20000" % (SWP + 3))
A("s_lshl_b32 s63, s%d, 2" % MT)
div9(13, 4, 63)
for k in range(1, 9):
    A("s_add_u32 s%d, s%d, 1" % (4 + k, 3 + k))
    A("s_cmp_eq_u32 s%d, 9" % (4 + k))
    A("s_cselect_b32 s%d, 0, s%d" % (4 + k, 4 + k))
for i in range(16): A("v_mov_b32 v%d, 0" % (GA + i))
A("s_mov_b32 s73, 0xbfb8aa3b")
A("s_waitcnt vmcnt(9)")
stamp(1)
A("v_lshlrev_b32 v122, 16, v120")
A("v_lshlrev_b32 v123, 16, v121")
A("v_and_b32 v124, s%d, v120" % MASK)
A("v_and_b32 v125, s%d, v121" % MASK)
for i in range(4): A("v_mul_f32 v%d, s73, v%d" % (126 + i, 122 + i))
for i in range(4): A("v_exp_f32 v%d, v%d" % (126 + i, 126 + i))
for i in range(4): A("v_add_f32 v%d, 1.0, v%d" % (126 + i, 126 + i))
for i in range(4): A("v_rcp_f32 v%d, v%d" % (126 + i, 126 + i))
for i in range(4): A("v_mul_f32 v%d, v%d, v%d" % (126 + i, 126 + i, 122 + i))
A("v_cvt_pk_bf16_f32 v130, v126, v127")
A("v_cvt_pk_bf16_f32 v131, v128, v129")
A("v_lshlrev_b32 v10, 3, v0")
A("ds_write_b64 v10, v[130:131] offset:%d" % (L_SI - 65536 + 65536 if L_SI < 65536 else 0)) if False else None
A("v_add_u32 v10, %d, v10" % L_SI)
A("ds_write_b64 v10, v[130:131]")
A("s_waitcnt lgkmcnt(0)")
A("s_barrier")
A("v_lshlrev_b32 v10, 2, v7")
A("v_add_u32 v10, %d, v10" % L_SI)
for j in range(9): A("ds_read_b32 v%d, v10 offset:%d" % (120 + j, j * 128))
A("v_mov_b32 v11, 0")
A("buffer_load_dword v134, v11, %s, 0 offen sc0 sc1" % s(SDBG, 4))
for r in range(8): A("s_mov_b32 s%d, %d" % (72 + r - 4 + 0, 0)) if False else None
A("s_mul_i32 s13, s%d, %d" % (WAVE, 288 * 6912))
A("s_lshl_b32 s14, s%d, 8" % NT)
A("s_add_u32 s13, s13, s14")
A("v_mul_u32_u24 v6, %d, v4" % (8 * 6912))
A("v_lshl_add_u32 v6, v3, 4, v6")
A("v_add_u32 v6, s13, v6")
A("s_mov_b32 s18, s68")
A("s_mov_b32 s19, s69")
WRO = 68
for r in range(8): A("s_mov_b32 s%d, %d" % (WRO + r, r * 6912))
XO = 76
for m in range(4):
    A("s_add_u32 s13, s%d, %d" % (WAVE, m))
    A("s_and_b32 s13, s13, 3")
    A("s_lshl_b32 s14, s%d, 2" % MT)
    A("s_add_u32 s13, s13, s14")
    A("s_mul_i32 s13, s13, 36")
    A("s_mul_i32 s14, s%d, 9" % WAVE)
    A("s_add_u32 s13, s13, s14")
    A("s_lshl_b32 s%d, s13, 10" % (XO + m))
A("v_mov_b32 v135, %d" % (32 * 6912))
DW, DX = 4, 3
WR = 12; XR = WR + 32 * DW; H = XR + 16 * DX; F = H + 32; AB = F + 12; T0 = AB + 16
assert T0 + 4 <= 252
def waddr(k): return "v_mad_u32_u24 v9, s%d, v7, v6" % (4 + k)
def wload(k, r): return "buffer_load_dwordx4 %s, v9, %s, s%d offen nt" % (v(WR + 32 * (k % DW) + 4 * r, 4), s(SWQ, 4), WRO + r)
def xaddr(k): return "v_lshl_add_u32 v10, s%d, 10, v5" % (4 + k)
def xload(k, m): return "buffer_load_dwordx4 %s, v10, %s, s%d offen sc1" % (v(XR + 16 * (k % DX) + 4 * m, 4), s(SWS, 4), XO + m)
A("s_waitcnt lgkmcnt(0)")
for j in range(9):
    A("v_lshlrev_b32 v%d, 16, v%d" % (GS + 2 * j, 120 + j))
    A("v_and_b32 v%d, s%d, v%d" % (GS + 2 * j + 1, MASK, 120 + j))
A("v_mov_b32 v136, v8")
A("v_mov_b32 v7, v135")
for j in range(9):
    A("s_waitcnt vmcnt(%d)" % (9 - j))
    for q in range(4):
        w = GW + 4 * j + q
        A("v_lshlrev_b32 v130, 16, v%d" % w)
        A("v_and_b32 v131, s%d, v%d" % (MASK, w))
        for b in range(2):
            A("v_fmac_f32 v%d, v130, v%d" % (GA + 8 * b + 2 * q, GS + 2 * j + b))
            A("v_fmac_f32 v%d, v131, v%d" % (GA + 8 * b + 2 * q + 1, GS + 2 * j + b))
stamp(2)
for i in range(16):
    A("v_add_f32_dpp v%d, v%d, v%d row_ror:8 row_mask:0xf bank_mask:0xf" % (GA + i, GA + i, GA + i))
A("v_lshrrev_b32 v10, 4, v0")
A("v_lshlrev_b32 v10, 9, v10")
A("v_lshl_add_u32 v10, v136, 5, v10")
A("v_add_u32 v10, %d, v10" % L_GR)
A("v_and_b32 v11, 8, v0")
A("v_cmp_eq_u32 vcc, 0, v11")
A("s_and_saveexec_b64 s[16:17], vcc")
for q in range(4):
    A("ds_write_b128 v10, %s offset:%d" % (v(GA + 4 * q, 4), (q >> 1) * 256 + (q & 1) * 16))
A("s_mov_b64 exec, s[16:17]")
A("s_waitcnt vmcnt(0)")
A("v_readfirstlane_b32 s%d, v134" % NONCE)
A("s_cmp_lg_u32 s%d, 0" % NONCE)
A("s_cbranch_scc1 L_have_nonce")
get_nonce(11, 134)
A("L_have_nonce:")
A("s_waitcnt lgkmcnt(0)")
A("s_barrier")
A("s_cmp_lg_u32 s%d, 0" % WAVE)
A("s_cbranch_scc1 L_gemv_pub_done")
A("v_and_b32 v10, 31, v2")
A("v_lshlrev_b32 v10, 4, v10")
A("v_lshrrev_b32 v11, 5, v2")
A("v_lshl_add_u32 v11, v11, 12, v10")
A("v_add_u32 v11, %d, v11" % L_GR)
for p in range(8): A("ds_read_b128 %s, v11 offset:%d" % (v(GW + 4 * p, 4), p * 512))
tag_bytes(13)
A("v_bfe_u32 v120, v2, 4, 1")
A("v_mul_u32_u24 v120, %d, v120" % (4 * 13824))
A("v_lshl_add_u32 v120, v3, 4, v120")
A("s_mul_i32 s17, s18, 13824")
A("s_lshl_b32 s63, s19, 8")
A("s_add_u32 s17, s17, s63")
A("s_add_u32 s17, s17, %d" % PART)
A("s_movk_i32 s63, 0xff00")
A("s_waitcnt lgkmcnt(0)")
for st in (4, 2, 1):
    for p in range(st):
        for e in range(4): A("v_add_f32 v%d, v%d, v%d" % (GW + 4 * p + e, GW + 4 * p + e, GW + 4 * (p + st) + e))
for e in range(4): A("v_mov_b32 v%d, v%d" % (GW + 4 + e, GW + e))
for e in range(4): A("v_permlane32_swap_b32 v%d, v%d" % (GW + e, GW + 4 + e))
for e in range(4): A("v_add_f32 v%d, v%d, v%d" % (GW + e, GW + e, GW + 4 + e))
for e in range(4):
    A("v_and_b32 v%d, s63, v%d" % (GW + e, GW + e))
    A("v_or_b32 v%d, s%d, v%d" % (GW + e, 13 + e, GW + e))
A("v_cmp_gt_u32 vcc, 32, v2")
A("s_and_saveexec_b64 s[14:15], vcc")
A("buffer_store_dwordx4 %s, v120, %s, s17 offen sc0 sc1" % (v(GW, 4), s(SWS, 4)))
A("s_mov_b64 exec, s[14:15]")
A("L_gemv_pub_done:")
A("s_barrier")
stamp(3)
for k in range(DW):
    A(waddr(k))
    for r in range(8): A(wload(k, r))
stamp(4)
A("v_and_b32 v252, 3, v2")
A("v_lshlrev_b32 v252, 7, v252")
A("s_lshl_b32 s13, s%d, 9" % MT)
A("s_add_u32 s13, s13, %d" % FX)
poll(252, 253, "s13")
stamp(5)
G = H
A("s_lshr_b32 s13, s%d, 2" % MT)
A("s_mul_i32 s13, s13, %d" % (4 * 13824))
A("s_mul_i32 s14, s%d, 1152" % WAVE)
A("s_add_u32 s13, s13, s14")
A("s_add_u32 s13, s13, %d" % PART)
for kq in range(1, 4): A("s_add_u32 s%d, s13, %d" % (13 + kq, kq * 13824))
A("v_mov_b32 v252, v5")
A("v_add_u32 v253, 0x400, v5")
A("v_cmp_lt_u32 vcc, 7, v2")
A("v_add_u32 v254, %d, v253" % (4608 - 1152))
A("v_cndmask_b32 v253, v253, v254, vcc")
A("v_min_u32 v254, 15, v2")
A("v_lshlrev_b32 v254, 4, v254")
A("v_add_u32 v254, %d, v254" % (2048 + 4608 - 1152))
def gather():
    for i in range(3):
        for kq in range(4):
            A("buffer_load_dwordx4 %s, v%d, %s, s%d offen sc0 sc1" % (v(G + 16 * i + 4 * kq, 4), 252 + i, s(SWS, 4), 13 + kq))
gather()
for k in range(DX):
    A(xaddr(k))
    for m in range(4): A(xload(k, m))
A("s_mov_b32 s%d, 0" % CNT)
A("s_lshr_b32 s17, s%d, 8" % NONCE)
A("s_lshr_b32 s18, s%d, 16" % NONCE)
A("s_lshr_b32 s19, s%d, 24" % NONCE)
A("s_waitcnt vmcnt(%d)" % (4 * DX))
A("L_gchk:")
tg = [NONCE, 17, 18, 19]
A("v_xor_b32 v255, s%d, v%d" % (tg[0], G))
for i in range(1, 48):
    A("v_bitop3_b32 v255, v%d, s%d, v255 bitop3:0xbe" % (G + i, tg[i & 3]))
A("v_and_b32 v255, 0xff, v255")
A("v_cmp_ne_u32 vcc, 0, v255")
A("s_cbranch_vccz L_gok")
A("s_add_u32 s%d, s%d, 1" % (CNT, CNT))
A("s_cmp_lt_u32 s%d, %d" % (CNT, POLL_LIMIT))
A("s_cbranch_scc0 L_gok")
gather()
A("s_waitcnt vmcnt(0)")
A("s_branch L_gchk")
A("L_gok:")
stamp(6)
A("s_movk_i32 s63, 0xff00")
for i in range(48): A("v_and_b32 v%d, s63, v%d" % (G + i, G + i))
for i in range(3):
    for e in range(4):
        b = G + 16 * i + e
        A("v_add_f32 v%d, v%d, v%d" % (b, b, b + 4))
        A("v_add_f32 v%d, v%d, v%d" % (b + 8, b + 8, b + 12))
        A("v_add_f32 v%d, v%d, v%d" % (b, b, b + 8))
A("v_cmp_lt_u32 vcc, 7, v2")
A("v_cndmask_b32 v255, 0, 1.0, vcc")
for i in range(3):
    for e in range(4):
        b = G + 16 * i + e
        bf16_round("v%d" % b, "v%d" % b)
        if i > 0:
            A("v_add_f32 v%d, %s, v%d" % (b, "v255" if i == 1 else "1.0", b))
            bf16_round("v%d" % b, "v%d" % b)
A("s_mul_i32 s13, s%d, 3072" % WAVE)
def ab_addr(dst, qreg, extra):
    A("v_lshrrev_b32 v%d, 1, v%d" % (dst, qreg))
    A("v_lshlrev_b32 v%d, 6, v%d" % (dst, dst))
    A("v_and_b32 v%d, 1, v%d" % (qreg, qreg))
    A("v_lshl_add_u32 v%d, v%d, 4, v%d" % (dst, qreg, dst))
    A("v_add3_u32 v%d, v%d, s13, %s" % (dst, dst, extra))
A("v_mov_b32 v11, v2")
ab_addr(252, 11, "32")
A("v_add_u32 v11, 64, v2")
A("v_subrev_u32 v8, 8, v2")
A("v_cndmask_b32 v11, v11, v8, vcc")
A("v_cndmask_b32 v8, 32, 0, vcc")
ab_addr(253, 11, "v8")
A("v_min_u32 v11, 15, v2")
A("v_add_u32 v11, 56, v11")
ab_addr(254, 11, "0")
for i in range(3): A("ds_write_b128 v%d, %s" % (252 + i, v(G + 16 * i, 4)))
A("v_lshl_add_u32 v8, v4, 6, s13")
def abaddr(k): return "v_lshl_add_u32 v11, s%d, 8, v8" % (4 + k)
def readAB(k): return [abaddr(k)] + ["ds_read_b128 %s, v11 offset:%d" % (v(AB + 4 * q, 4), 16 * q) for q in range(4)]
def mod_ops(k):
    ops = []
    for m in range(4):
        for q in range(4):
            src = XR + 16 * (k % DX) + 4 * m + q
            t0, t1 = T0 + 2 * (q & 1), T0 + 2 * (q & 1) + 1
            ops.append("v_fma_mix_f32 v%d, v%d, v%d, v%d op_sel_hi:[1,0,0]" % (t0, src, AB + 2 * q, AB + 8 + 2 * q))
            ops.append("v_fma_mix_f32 v%d, v%d, v%d, v%d op_sel:[1,0,0] op_sel_hi:[1,0,0]" % (t1, src, AB + 2 * q + 1, AB + 8 + 2 * q + 1))
            ops.append("v_cvt_pk_bf16_f32 v%d, v%d, v%d" % (H + 16 * (k & 1) + 4 * m + q, t0, t1))
    return ops
def perm_ops(k, j):
    base = WR + 32 * (k % DW)
    return ["v_perm_b32 v%d, v%d, v%d, s%d" % (F + 4 * (j % 3) + q, base + 4 * (2 * q + 1) + (j >> 1), base + 4 * (2 * q) + (j >> 1), PLO + (j & 1)) for q in range(4)]
def mfma(k, j, m):
    acc = a(16 * j + 4 * m, 4)
    return "v_mfma_f32_16x16x32_bf16 %s, %s, %s, %s" % (acc, v(F + 4 * (j % 3), 4), v(H + 16 * (k & 1) + 4 * m, 4), "0" if k == 0 else acc)
order = []
for k in range(DX): order += [("X", k)] * 4
def wait_for(tag):
    idx = [i for i, t in enumerate(order) if t == tag]
    if not idx: return None
    return "s_waitcnt vmcnt(%d)" % (len(order) - 1 - max(idx))
A("s_waitcnt lgkmcnt(0)")
for l in readAB(0): A(l)
A(wait_for(("X", 0)))
A("s_waitcnt lgkmcnt(0)")
for l in mod_ops(0): A(l)

TB, CB = 14, 15
A("s_lshr_b32 s%d, s%d, 1" % (TB, XCD))
A("s_lshl_b32 s%d, s%d, 2" % (TB, TB))
A("s_and_b32 s13, s%d, 3" % SLOT)
A("s_add_u32 s%d, s%d, s13" % (TB, TB))
A("s_and_b32 s%d, s%d, 1" % (CB, XCD))
A("s_lshl_b32 s%d, s%d, 2" % (CB, CB))
A("s_bfe_u32 s13, s%d, 0x20002" % SLOT)
A("s_add_u32 s%d, s%d, s13" % (CB, CB))
WOS = 16
A("s_mul_i32 s%d, s%d, 36" % (WOS, CB))
A("s_mul_i32 s13, s%d, 9" % WAVE)
A("s_add_u32 s%d, s%d, s13" % (WOS, WOS))
A("s_mul_i32 s%d, s%d, 9216" % (WOS, WOS))
A("s_add_u32 s%d, s%d, %d" % (WOS, WOS, WOP))
A("v_min_u32 v252, 5, v2")
A("v_cmp_lt_u32 vcc, 2, v252")
A("v_subrev_u32 v253, 3, v252")
A("v_cndmask_b32 v252, v252, v253, vcc")
A("v_mul_u32_u24 v252, 9, v252")
A("v_addc_co_u32 v252, vcc, 0, v252, vcc")
A("v_lshlrev_b32 v252, 7, v252")
A("s_mul_i32 s13, s%d, 9" % WAVE)
A("s_lshr_b32 s13, s13, 2")
A("s_mul_i32 s13, s13, 9")
A("s_mul_i32 s17, s%d, 144" % CB)
A("s_lshr_b32 s17, s17, 7")
A("s_add_u32 s17, s17, s13")
A("s_lshl_b32 s17, s17, 7")
A("s_add_u32 s17, s17, %d" % FW)
def wo_reg(f):
    if f < 32: return a(128 + 4 * f, 4)
    if f < 78: return v(16 + 4 * (f - 32), 4)
    return a(4 * (f - 78), 4)
def wo_load(f):
    l = []
    if f and f % 4 == 0: l.append("s_add_u32 s%d, s%d, 4096" % (WOS, WOS))
    l.append("buffer_load_dwordx4 %s, v5, %s, s%d offen offset:%d sc1" % (wo_reg(f), s(SWP, 4), WOS, (f % 4) * 1024))
    return l

for k in range(9):
    loads = []
    if k + DX < 9:
        for m in range(4): loads.append((([xaddr(k + DX)] if m == 0 else []) + [xload(k + DX, m)], ("X", k + DX)))
    kw = k - 1 + DW
    if k >= 1 and kw < 9:
        for r in range(8): loads.append((([waddr(kw)] if r == 0 else []) + [wload(kw, r)], ("W", kw)))
    if k == 6:
        A("s_cmp_ge_u32 s%d, 16" % SLOT)
        A("s_cbranch_scc1 L_nowoflag")
        poll(252, 253, "s17")
        A("L_nowoflag:")
    if k >= 6:
        lo, hi = [(0, 10), (10, 21), (21, 32)][k - 6]
        for f in range(lo, hi): loads.append((wo_load(f), ("O", f)))
    if k + 1 < 9:
        for l in readAB(k + 1): A(l)
    w = wait_for(("W", k))
    if w: A(w)
    for l in perm_ops(k, 0): A(l)
    for l in perm_ops(k, 1): A(l)
    fill = mod_ops(k + 1) if k + 1 < 9 else []
    first_fill = True
    fi = 0; li = 0
    for j in range(8):
        pj = perm_ops(k, j + 2) if j + 2 < 8 else []
        for m in range(4):
            A(mfma(k, j, m))
            if pj: A(pj[m])
            n = 4 * j + m
            if li < len(loads) and li * 30 <= n * len(loads):
                for l in loads[li][0]: A(l)
                order.append(loads[li][1]); li += 1
            nf = 2 if j >= 1 else 0
            if j >= 6: nf = 3
            for _ in range(nf):
                if fi < len(fill):
                    if first_fill:
                        A(wait_for(("X", k + 1)))
                        A("s_waitcnt lgkmcnt(0)")
                        first_fill = False
                    A(fill[fi]); fi += 1
    while li < len(loads):
        for l in loads[li][0]: A(l)
        order.append(loads[li][1]); li += 1
    while fi < len(fill):
        A(fill[fi]); fi += 1
stamp(7)
for m in range(1, 4):
    A("s_add_u32 s13, s%d, %d" % (WAVE, m))
    A("s_and_b32 s13, s13, 3")
    A("s_mul_i32 s13, s13, 24576")
    A("s_add_u32 s13, s13, %d" % (L_RED + (m - 1) * 8192))
    A("v_add_u32 v%d, s13, v5" % (8 + m))
for m in range(1, 4):
    for j in range(8):
        A("ds_write_b128 v%d, %s offset:%d" % (8 + m, a(16 * j + 4 * m, 4), j * 1024))
R0 = 200
for j in range(8):
    for r in range(4): A("v_accvgpr_read_b32 v%d, a%d" % (R0 + 4 * j + r, 16 * j + r))
A("s_mul_i32 s13, s%d, 24576" % WAVE)
A("s_add_u32 s13, s13, %d" % L_RED)
A("v_add_u32 v12, s13, v5")
div9(18, 19, NT)
A("s_lshl_b32 s18, s18, 5")
A("s_lshl_b32 s13, s%d, 2" % MT)
A("s_add_u32 s18, s18, s13")
A("s_add_u32 s18, s18, s%d" % WAVE)
A("s_mul_i32 s18, s18, 36")
A("s_lshl_b32 s19, s19, 2")
A("s_add_u32 s18, s18, s19")
A("s_lshl_b32 s18, s18, 10")
A("s_add_u32 s18, s18, %d" % QKV)
A("s_mul_i32 s19, s%d, 27" % MT)
A("s_add_u32 s19, s19, s%d" % NT)
A("s_lshl_b32 s19, s19, 7")
A("s_add_u32 s19, s19, %d" % FQ)
A("s_waitcnt lgkmcnt(0)")
A("s_barrier")
RD = 100
for sl in range(3):
    for j in range(8):
        A("ds_read_b128 %s, v12 offset:%d" % (v(RD + 32 * sl + 4 * j, 4), sl * 8192 + j * 1024))
for sl in range(3):
    for j in range(8):
        rem = 24 - (sl * 8 + j + 1)
        A("s_waitcnt lgkmcnt(%d)" % min(rem, 15))
        for r in range(4):
            A("v_add_f32 v%d, v%d, v%d" % (R0 + 4 * j + r, R0 + 4 * j + r, RD + 32 * sl + 4 * j + r))
O = 232
for f in range(4):
    for q in range(4):
        A("v_cvt_pk_bf16_f32 v%d, v%d, v%d" % (O + 4 * f + q, R0 + 4 * (2 * q) + f, R0 + 4 * (2 * q + 1) + f))
    A("buffer_store_dwordx4 %s, v5, %s, s18 offen offset:%d sc1" % (v(O + 4 * f, 4), s(SWS, 4), f * 1024))
NEARLY = 6
for f in range(32, 32 + NEARLY):
    for l in wo_load(f): A(l)
A("s_waitcnt vmcnt(%d)" % NEARLY)
A("s_barrier")
set_flag("s19", 252, 253)
stamp(8)
A("s_cmp_ge_u32 s%d, 16" % SLOT)
A("s_cbranch_scc1 L_phase3_s")
for f in range(32 + NEARLY, 81):
    for l in wo_load(f): A(l)
A("v_min_u32 v252, 2, v2")
A("v_lshlrev_b32 v252, 7, v252")
A("s_lshr_b32 s13, s%d, 1" % TB)
A("s_mul_i32 s13, s13, 27")
A("s_mul_i32 s17, s%d, 9" % WAVE)
A("s_lshr_b32 s18, s17, 2")
A("s_add_u32 s13, s13, s18")
A("s_lshl_b32 s13, s13, 7")
A("s_add_u32 s13, s13, %d" % (FQ + 18 * 128))
A("s_lshl_b32 s18, s%d, 1" % TB)
A("s_mul_i32 s18, s18, 36")
A("s_add_u32 s18, s18, s17")
A("s_lshl_b32 s18, s18, 10")
A("s_add_u32 s18, s18, %d" % (QKV + 64 * 36 * 1024))
A("s_add_u32 s19, s18, %d" % (36 * 1024))
A("v_add_u32 v6, 0x1000, v5")
A("v_add_u32 v7, 0x2000, v5")
poll(252, 253, "s13")
stamp(9)
def vfrag(k, m): return a(12 + 8 * k + 4 * m, 4)
def vacc(m, ct):
    i = 9 * m + ct
    return a(84 + 4 * i, 4) if i < 11 else v(200 + 4 * (i - 11), 4)
for k in range(9):
    for m in range(2):
        A("buffer_load_dwordx4 %s, v%d, %s, s%d offen offset:%d sc1" % (vfrag(k, m), 5 + k // 4, s(SWS, 4), 18 + m, (k % 4) * 1024))
A("s_mul_i32 s13, s%d, 18432" % WAVE)
A("s_add_u32 s13, s13, %d" % L_RED)
A("v_add_u32 v8, s13, v5")
A("s_lshl_b32 s13, s%d, 11" % WAVE)
A("s_add_u32 s13, s13, %d" % L_RED)
A("v_add_u32 v9, s13, v5")
A("v_add_u32 v10, %d, v9" % 36864)
for k in range(9):
    for m in range(2):
        A("s_waitcnt vmcnt(%d)" % (17 - 2 * k - m))
        for ct in range(9):
            A("v_mfma_f32_16x16x32_bf16 %s, %s, %s, %s" % (vacc(m, ct), vfrag(k, m), wo_reg(9 * k + ct), "0" if k == 0 else vacc(m, ct)))
for ct in range(9):
    for m in range(2):
        A("ds_write_b128 v8, %s offset:%d" % (vacc(m, ct), ct * 2048 + m * 1024))
A("s_lshl_b32 s13, s%d, 3" % TB)
A("s_add_u32 s13, s13, s%d" % CB)
A("s_lshl_b32 s19, s13, 7")
A("s_add_u32 s19, s19, %d" % FV)
A("s_mul_i32 s18, s13, 9")
A("s_add_u32 s18, s18, s%d" % WAVE)
A("s_lshl_b32 s18, s18, 10")
A("s_add_u32 s18, s18, %d" % VT)
A("s_waitcnt lgkmcnt(0)")
A("s_barrier")
for u in range(3):
    if u == 2:
        A("s_cmp_lg_u32 s%d, 0" % WAVE)
        A("s_cbranch_scc1 L_v_red_done")
    base = 16 + 32 * u
    for sw in range(4):
        for m in range(2):
            A("ds_read_b128 %s, v%d offset:%d" % (v(base + 8 * sw + 4 * m, 4), 9 + (sw >> 1), (sw & 1) * 18432 + u * 8192 + m * 1024))
    if u == 0: continue
    for uu in ([0, 1] if u == 1 else [2]):
        b2 = 16 + 32 * uu
        A("s_waitcnt lgkmcnt(%d)" % (8 if uu == 0 else 0))
        for e in range(8):
            A("v_add_f32 v%d, v%d, v%d" % (b2 + e, b2 + e, b2 + 8 + e))
            A("v_add_f32 v%d, v%d, v%d" % (b2 + 16 + e, b2 + 16 + e, b2 + 24 + e))
        for e in range(8): A("v_add_f32 v%d, v%d, v%d" % (b2 + e, b2 + e, b2 + 16 + e))
        for q in range(4): A("v_cvt_pk_bf16_f32 v%d, v%d, v%d" % (120 + 4 * uu + q, b2 + 2 * q, b2 + 2 * q + 1))
        A("buffer_store_dwordx4 %s, v%d, %s, s18 offen sc1" % (v(120 + 4 * uu, 4), 5 + uu, s(SWS, 4)))
A("L_v_red_done:")
A("s_branch L_phase3_done")

A("L_aux:")
A.srd(SWO, 10, 1152 * 2304)
A.srd(SOUT, 14, 512 * 2304)
AUX = 60
A("s_sub_u32 s13, s%d, s63" % SLOT)
A("s_lshl_b32 s14, s%d, 2" % XCD)
A("s_lshl_b32 s15, s%d, 3" % XCD)
A("s_sub_u32 s15, s15, 24")
A("s_cmp_lt_u32 s%d, 6" % XCD)
A("s_cselect_b32 s14, s14, s15")
A("s_add_u32 s%d, s13, s14" % AUX)
A("s_cmp_ge_u32 s%d, 32" % AUX)
A("s_cbranch_scc1 L_noln")
A("v_mul_u32_u24 v6, 2304, v3")
A("v_lshl_add_u32 v6, v4, 4, v6")
A("s_mul_i32 s13, s%d, %d" % (AUX, 16 * 2304))
A("s_mul_i32 s14, s%d, 576" % WAVE)
A("s_add_u32 s13, s13, s14")
for j in range(9):
    A("buffer_load_dwordx4 %s, v6, %s, s13 offen offset:%d" % (v(12 + 4 * j, 4), s(SX, 4), 64 * j))
A("v_lshrrev_b32 v7, 4, v0")
A("v_lshlrev_b32 v7, 2, v7")
A("v_lshl_add_u32 v7, v3, 6, v7")
A("v_lshlrev_b32 v8, 6, v3")
X = 50
A("v_mov_b32 v130, 0")
A("v_mov_b32 v131, 0")
for j in range(9):
    A("s_waitcnt vmcnt(%d)" % (8 - j))
    for q in range(4):
        A("v_lshlrev_b32 v%d, 16, v%d" % (X + 8 * j + 2 * q, 12 + 4 * j + q))
        A("v_and_b32 v%d, s%d, v%d" % (X + 8 * j + 2 * q + 1, MASK, 12 + 4 * j + q))
        A("v_add_f32 v130, v130, v%d" % (X + 8 * j + 2 * q))
        A("v_add_f32 v131, v131, v%d" % (X + 8 * j + 2 * q + 1))
stamp(1)
def xreduce(off):
    A("v_add_f32 v130, v130, v131")
    A("ds_write_b32 v7, v130 offset:%d" % off)
    A("s_waitcnt lgkmcnt(0)")
    A("s_barrier")
    for q in range(4): A("ds_read_b128 %s, v8 offset:%d" % (v(132 + 4 * q, 4), off + 16 * q))
    A("s_waitcnt lgkmcnt(0)")
    for st in (8, 4, 2, 1):
        for p in range(st): A("v_add_f32 v%d, v%d, v%d" % (132 + p, 132 + p, 132 + p + st))
xreduce(0)
A("s_mov_b32 s15, 0x3a638e39")
A("v_mul_f32 v150, s15, v132")
A("v_mov_b32 v130, 0")
A("v_mov_b32 v131, 0")
for i in range(72):
    A("v_sub_f32 v%d, v%d, v150" % (X + i, X + i))
    A("v_fmac_f32 v%d, v%d, v%d" % (130 + (i & 1), X + i, X + i))
xreduce(1024)
A("v_mul_f32 v151, s15, v132")
bf16_round("v151", "v151")
A("v_add_f32 v151, 0x3727c5ac, v151")
bf16_round("v151", "v151")
A("v_sqrt_f32 v151, v151")
bf16_round("v151", "v151")
A("v_rcp_f32 v151, v151")
bf16_round("v152", "v150")
A("v_sub_f32 v152, v150, v152")
A("v_mul_f32 v152, v152, v151")
A("s_mul_i32 s13, s%d, 36" % AUX)
A("s_mul_i32 s14, s%d, 9" % WAVE)
A("s_add_u32 s13, s13, s14")
A("s_lshl_b32 s13, s13, 10")
for j in range(9):
    for q in range(4):
        i = 8 * j + 2 * q
        A("v_fma_f32 v%d, v%d, v151, v152" % (X + i, X + i))
        A("v_fma_f32 v%d, v%d, v151, v152" % (X + i + 1, X + i + 1))
        A("v_cvt_pk_f16_f32 v%d, v%d, v%d" % (12 + 4 * j + q, X + i, X + i + 1))
    if j and j % 4 == 0: A("s_add_u32 s13, s13, 4096")
    A("buffer_store_dwordx4 %s, v5, %s, s13 offen offset:%d sc1" % (v(12 + 4 * j, 4), s(SWS, 4), (j % 4) * 1024))
stamp(2)
get_nonce(9, 10)
A("s_barrier")
A("s_lshl_b32 s13, s%d, 7" % AUX)
A("s_add_u32 s13, s13, %d" % FX)
set_flag("s13", 9, 10)
A("s_branch L_pack")
A("L_noln:")
get_nonce(9, 10)
A("L_pack:")
stamp(3)
A("v_mul_u32_u24 v6, %d, v4" % (32 * 2304))
A("v_lshl_add_u32 v6, v3, 4, v6")
A("s_mul_i32 s13, s%d, %d" % (WAVE, 8 * 2304))
A("v_add_u32 v6, s13, v6")
A("v_lshrrev_b32 v7, 1, v3")
A("v_lshlrev_b32 v7, 10, v7")
A("v_and_b32 v8, 1, v3")
A("v_lshl_add_u32 v7, v8, 7, v7")
A("v_lshl_add_u32 v7, v4, 8, v7")
A("s_mul_i32 s13, s%d, 24576" % WAVE)
A("s_add_u32 s13, s13, %d" % L_RED)
A("v_add_u32 v7, s13, v7")
A("v_add_u32 v8, s13, v5")
UN = 68
for u in range(3):
    if u < 2: A("s_add_u32 s%d, s%d, %d" % (UN + u, AUX, 40 * u))
    else: A("s_mov_b32 s%d, 80" % (UN + u))
    div9(72 + u, 76 + u, UN + u)
    A("s_mul_i32 s13, s%d, %d" % (72 + u, 128 * 2304))
    A("s_lshl_b32 s14, s%d, 8" % (76 + u))
    A("s_add_u32 s13, s13, s14")
    if u == 2:
        A("s_cmp_lg_u32 s%d, 39" % AUX)
        A("s_cbranch_scc1 L_pack_l2")
    for p in range(8):
        A("buffer_load_dwordx4 %s, v6, %s, s13 offen nt" % (v(12 + 32 * u + 4 * p, 4), s(SWO, 4)))
        if p < 7: A("s_add_u32 s13, s13, 2304")
A("L_pack_l2:")
A("s_waitcnt vmcnt(0)")
for u in range(3):
    if u == 2:
        A("s_cmp_lg_u32 s%d, 39" % AUX)
        A("s_cbranch_scc1 L_pack_done")
    base = 12 + 32 * u
    for j in range(8):
        fb = 120 + 4 * j
        for q in range(4):
            A("v_perm_b32 v%d, v%d, v%d, s%d" % (fb + q, base + 4 * (2 * q + 1) + (j >> 1), base + 4 * (2 * q) + (j >> 1), PLO + (j & 1)))
        A("ds_write_b128 v7, %s offset:%d" % (v(fb, 4), u * 8192 + j * 16))
    A("s_waitcnt lgkmcnt(0)")
    for c in range(8): A("ds_read_b128 %s, v8 offset:%d" % (v(160 + 4 * c, 4), u * 8192 + c * 1024))
    A("s_lshl_b32 s4, s%d, 2" % (72 + u))
    A("s_add_u32 s4, s4, s%d" % WAVE)
    for c in range(8):
        A("s_lshl_b32 s5, s%d, 3" % (76 + u))
        A("s_add_u32 s5, s5, %d" % c)
        div9(6, 7, 5)
        A("s_mul_i32 s6, s6, 36")
        A("s_add_u32 s6, s6, s4")
        A("s_mul_i32 s6, s6, 9")
        A("s_add_u32 s6, s6, s7")
        A("s_lshl_b32 s6, s6, 10")
        A("s_add_u32 s6, s6, %d" % WOP)
        A("s_waitcnt lgkmcnt(%d)" % (7 - c))
        A("buffer_store_dwordx4 %s, v5, %s, s6 offen sc1" % (v(160 + 4 * c, 4), s(SWS, 4)))
    A("s_nop 1")
A("L_pack_done:")
A("s_waitcnt vmcnt(0)")
A("s_barrier")
for u in range(3):
    if u == 2:
        A("s_cmp_lg_u32 s%d, 39" % AUX)
        A("s_cbranch_scc1 L_pack_flags_done")
    A("s_lshl_b32 s13, s%d, 7" % (UN + u))
    A("s_add_u32 s13, s13, %d" % FW)
    set_flag("s13", 9, 10)
A("L_pack_flags_done:")
stamp(4)

A("L_phase3_s:")
QB, KB, BT = 4, 5, 6
A("s_lshr_b32 s%d, s%d, 2" % (BT, XCD))
A("s_and_b32 s%d, s%d, 1" % (QB, XCD))
A("s_lshl_b32 s%d, s%d, 2" % (QB, QB))
A("s_and_b32 s13, s%d, 3" % SLOT)
A("s_add_u32 s%d, s%d, s13" % (QB, QB))
A("s_bfe_u32 s%d, s%d, 0x10001" % (KB, XCD))
A("s_lshl_b32 s%d, s%d, 2" % (KB, KB))
A("s_bfe_u32 s13, s%d, 0x20002" % SLOT)
A("s_add_u32 s%d, s%d, s13" % (KB, KB))
A("s_mul_i32 s17, s%d, 9" % WAVE)
A("s_lshr_b32 s18, s17, 2")
A("s_lshl_b32 s7, s%d, 2" % BT)
A("s_lshr_b32 s8, s%d, 1" % QB)
A("s_add_u32 s8, s8, s7")
A("s_mul_i32 s8, s8, 27")
A("s_add_u32 s8, s8, s18")
A("s_lshr_b32 s9, s%d, 1" % KB)
A("s_add_u32 s9, s9, s7")
A("s_mul_i32 s9, s9, 27")
A("s_add_u32 s9, s9, s18")
A("s_add_u32 s9, s9, 6")
A("v_min_u32 v252, 5, v2")
A("v_mov_b32 v253, s8")
A("v_mov_b32 v254, s9")
A("v_cmp_gt_u32 vcc, 3, v252")
A("v_cndmask_b32 v253, v254, v253, vcc")
A("v_add_u32 v252, v252, v253")
A("v_lshlrev_b32 v252, 7, v252")
A("s_mov_b32 s13, %d" % FQ)
A("s_lshl_b32 s7, s%d, 4" % BT)
A("s_lshl_b32 s8, s%d, 1" % QB)
A("s_add_u32 s8, s8, s7")
A("s_mov_b32 s12, s8")
A("s_mul_i32 s8, s8, 36")
A("s_add_u32 s8, s8, s17")
A("s_lshl_b32 s8, s8, 10")
A("s_add_u32 s8, s8, %d" % QKV)
A("s_add_u32 s9, s8, %d" % (36 * 1024))
A("s_lshl_b32 s10, s%d, 1" % KB)
A("s_add_u32 s10, s10, s7")
A("s_mul_i32 s10, s10, 36")
A("s_add_u32 s10, s10, s17")
A("s_lshl_b32 s10, s10, 10")
A("s_add_u32 s10, s10, %d" % (QKV + 32 * 36 * 1024))
A("s_add_u32 s11, s10, %d" % (36 * 1024))
A("v_add_u32 v6, 0x1000, v5")
A("v_add_u32 v7, 0x2000, v5")
poll(252, 253, "s13")
stamp(9)
SB = 16
for k in range(9):
    for t in range(4):
        A("buffer_load_dwordx4 %s, v%d, %s, s%d offen offset:%d sc1" % (v(SB + 16 * k + 4 * t, 4), 5 + k // 4, s(SWS, 4), 8 + t, (k % 4) * 1024))
A("s_lshl_b32 s13, s%d, 12" % WAVE)
A("s_add_u32 s13, s13, %d" % L_RED)
A("v_add_u32 v8, s13, v5")
A("s_and_b32 s13, s%d, 1" % WAVE)
A("s_lshl_b32 s13, s13, 11")
A("s_add_u32 s13, s13, %d" % L_RED)
A("v_add_u32 v9, s13, v5")
SA = 170
for k in range(9):
    for m in range(2):
        A("s_waitcnt vmcnt(%d)" % (36 - 4 * k - 3 - m))
        for c in range(2):
            acc = v(SA + 8 * c + 4 * m, 4)
            A("v_mfma_f32_16x16x32_bf16 %s, %s, %s, %s" % (acc, v(SB + 16 * k + 8 + 4 * m, 4), v(SB + 16 * k + 4 * c, 4), "0" if k == 0 else acc))
for i in range(4): A("ds_write_b128 v8, %s offset:%d" % (v(SA + 4 * i, 4), i * 1024))
A("s_add_u32 s12, s12, s%d" % WAVE)
A("s_lshl_b32 s12, s12, 3")
A("s_add_u32 s12, s12, s%d" % KB)
A("s_lshl_b32 s18, s12, 10")
A("s_add_u32 s18, s18, %d" % PF)
A("s_lshl_b32 s17, s12, 6")
A("s_add_u32 s17, s17, %d" % MS)
A("s_lshl_b32 s19, s%d, 3" % BT)
A("s_add_u32 s19, s19, s%d" % QB)
A("s_lshl_b32 s19, s19, 3")
A("s_add_u32 s19, s19, s%d" % KB)
A("s_lshl_b32 s19, s19, 7")
A("s_add_u32 s19, s19, %d" % FP)
cs = struct.unpack("<I", struct.pack("<f", math.log2(math.e) * 1152 ** -0.5))[0]
A("s_mov_b32 s13, 0x%08x" % cs)
A("s_waitcnt lgkmcnt(0)")
A("s_barrier")
A("s_cmp_ge_u32 s%d, 2" % WAVE)
A("s_cbranch_scc1 L_phase3_done")
for sw in range(4):
    for m in range(2):
        A("ds_read_b128 %s, v9 offset:%d" % (v(16 + 8 * sw + 4 * m, 4), sw * 4096 + m * 1024))
A("s_waitcnt lgkmcnt(0)")
for e in range(8):
    A("v_add_f32 v%d, v%d, v%d" % (16 + e, 16 + e, 24 + e))
    A("v_add_f32 v%d, v%d, v%d" % (32 + e, 32 + e, 40 + e))
for e in range(8): A("v_add_f32 v%d, v%d, v%d" % (16 + e, 16 + e, 32 + e))
A("v_max3_f32 v50, v16, v17, v18")
A("v_max3_f32 v51, v19, v20, v21")
A("v_max3_f32 v50, v50, v22, v23")
A("v_max_f32 v50, v50, v51")
A("v_mov_b32 v51, v50")
A("v_permlane16_swap_b32 v50, v51")
A("v_max_f32 v50, v50, v51")
A("v_mov_b32 v51, v50")
A("v_permlane32_swap_b32 v50, v51")
A("v_max_f32 v50, v50, v51")
A("v_mul_f32 v50, s13, v50")
for i in range(8): A("v_fma_f32 v%d, v%d, s13, -v50" % (16 + i, 16 + i))
for i in range(8): A("v_exp_f32 v%d, v%d" % (16 + i, 16 + i))
for q in range(4): A("v_cvt_pk_bf16_f32 v%d, v%d, v%d" % (52 + q, 16 + 2 * q, 17 + 2 * q))
A("buffer_store_dwordx4 v[52:55], v5, %s, s18 offen sc1" % s(SWS, 4))
A("v_lshlrev_b32 v10, 2, v2")
A("v_cmp_gt_u32 vcc, 16, v2")
A("s_and_saveexec_b64 s[14:15], vcc")
A("buffer_store_dword v50, v10, %s, s17 offen sc1" % s(SWS, 4))
A("s_mov_b64 exec, s[14:15]")
A("L_phase3_done:")
A("s_waitcnt vmcnt(0)")
A("s_barrier")
set_flag("s19", 252, 253)
stamp(10)
A("s_cmp_eq_u32 s%d, 3" % WAVE)
A("s_cbranch_scc1 L_end")
TT, CK = 4, 5
A("s_lshr_b32 s%d, s%d, 2" % (BT, XCD))
A("s_lshl_b32 s%d, s%d, 4" % (TT, BT))
A("s_and_b32 s13, s%d, 15" % SLOT)
A("s_add_u32 s%d, s%d, s13" % (TT, TT))
A("s_and_b32 s%d, s%d, 3" % (CK, XCD))
A("s_lshl_b32 s%d, s%d, 1" % (CK, CK))
A("s_lshr_b32 s13, s%d, 4" % SLOT)
A("s_add_u32 s%d, s%d, s13" % (CK, CK))
A("s_mul_i32 s7, s%d, 3" % CK)
A("s_add_u32 s7, s7, s%d" % WAVE)
A("v_mul_u32_u24 v8, 2304, v3")
A("v_lshl_add_u32 v8, v4, 3, v8")
A("s_mul_i32 s8, s%d, %d" % (TT, 16 * 2304))
A("s_mul_i32 s13, s7, 96")
A("s_add_u32 s8, s8, s13")
for c in range(3):
    A("buffer_load_dwordx2 %s, v8, %s, s8 offen offset:%d" % (v(12 + 2 * c, 2), s(SX, 4), 32 * c))
GP = 20
A("v_lshlrev_b32 v9, 4, v4")
A("s_mul_i32 s9, s%d, %d" % (BT, 4 * 13824))
A("s_mul_i32 s13, s7, 192")
A("s_add_u32 s9, s9, s13")
A("s_add_u32 s9, s9, %d" % (PART + 9216))
for kq in range(1, 4): A("s_add_u32 s%d, s9, %d" % (9 + kq, kq * 13824))
A("s_lshr_b32 s17, s%d, 8" % NONCE)
A("s_lshr_b32 s18, s%d, 16" % NONCE)
A("s_lshr_b32 s19, s%d, 24" % NONCE)
A("s_mov_b32 s%d, 0" % CNT)
A("L_gate:")
for kq in range(4):
    for c in range(3):
        A("buffer_load_dwordx4 %s, v9, %s, s%d offen offset:%d sc0 sc1" % (v(GP + 12 * kq + 4 * c, 4), s(SWS, 4), 9 + kq, 64 * c))
A("s_waitcnt vmcnt(0)")
A("v_xor_b32 v255, s%d, v%d" % (tg[0], GP))
for i in range(1, 48):
    A("v_bitop3_b32 v255, v%d, s%d, v255 bitop3:0xbe" % (GP + i, tg[i & 3]))
A("v_and_b32 v255, 0xff, v255")
A("v_cmp_ne_u32 vcc, 0, v255")
A("s_cbranch_vccz L_gate_ok")
A("s_add_u32 s%d, s%d, 1" % (CNT, CNT))
A("s_cmp_lt_u32 s%d, %d" % (CNT, POLL_LIMIT))
A("s_cbranch_scc1 L_gate")
A("L_gate_ok:")
A("s_movk_i32 s63, 0xff00")
for i in range(48): A("v_and_b32 v%d, s63, v%d" % (GP + i, GP + i))
for i in range(12):
    A("v_add_f32 v%d, v%d, v%d" % (GP + i, GP + i, GP + 12 + i))
    A("v_add_f32 v%d, v%d, v%d" % (GP + 24 + i, GP + 24 + i, GP + 36 + i))
    A("v_add_f32 v%d, v%d, v%d" % (GP + i, GP + i, GP + 24 + i))
    bf16_round("v%d" % (GP + i), "v%d" % (GP + i))
A("s_lshr_b32 s13, s%d, 1" % TT)
A("s_lshl_b32 s13, s13, 10")
A("s_add_u32 s13, s13, %d" % FP)
A("s_lshl_b32 s14, s%d, 6" % BT)
A("s_add_u32 s14, s14, s%d" % CK)
A("s_lshl_b32 s14, s14, 7")
A("s_add_u32 s14, s14, %d" % FV)
A("v_and_b32 v252, 7, v2")
A("v_lshl_add_u32 v253, v252, 7, s13")
A("v_lshl_add_u32 v254, v252, 10, s14")
A("v_and_b32 v252, 8, v2")
A("v_cmp_eq_u32 vcc, 0, v252")
A("v_cndmask_b32 v252, v254, v253, vcc")
A("s_lshl_b32 s9, s%d, 13" % TT)
A("s_add_u32 s9, s9, %d" % PF)
A("s_lshl_b32 s10, s%d, 9" % TT)
A("s_add_u32 s10, s10, %d" % MS)
A("s_lshl_b32 s11, s%d, 6" % BT)
A("s_add_u32 s11, s11, s%d" % CK)
A("s_mul_i32 s11, s11, 9")
A("s_mul_i32 s13, s%d, 3" % WAVE)
A("s_add_u32 s11, s11, s13")
A("s_lshl_b32 s11, s11, 10")
A("s_add_u32 s11, s11, %d" % VT)
A("v_lshlrev_b32 v10, 2, v3")
A("v_add_u32 v6, 0x1000, v5")
ONES = 36
for q in range(4): A("v_mov_b32 v%d, 0x3f803f80" % (ONES + q))
poll(252, 253)
if STAMPS:
    A("s_memrealtime s[68:69]")
    A("s_waitcnt lgkmcnt(0)")
MR = 40
PB = 48
for k in range(8): A("buffer_load_dword v%d, v10, %s, s10 offen offset:%d sc1" % (MR + k, s(SWS, 4), 64 * k))
def vp(k, c): return a(12 * k + 4 * c, 4)
for k in range(8):
    A("buffer_load_dwordx4 %s, v%d, %s, s9 offen offset:%d sc1" % (v(PB + 4 * k, 4), 5 + k // 4, s(SWS, 4), (k % 4) * 1024))
    for c in range(3):
        A("buffer_load_dwordx4 %s, v5, %s, s11 offen offset:%d sc1" % (vp(k, c), s(SWS, 4), c * 1024))
    if k < 7: A("s_add_u32 s11, s11, 73728")
A("s_waitcnt vmcnt(32)")
A("v_max3_f32 v32, v40, v41, v42")
A("v_max3_f32 v33, v43, v44, v45")
A("v_max3_f32 v32, v32, v46, v47")
A("v_max_f32 v32, v32, v33")
for k in range(8): A("v_sub_f32 v%d, v%d, v32" % (MR + k, MR + k))
for k in range(8): A("v_exp_f32 v%d, v%d" % (MR + k, MR + k))
ACC = 80
OA = 210
def combine(k):
    for i in range(13):
        if k == 0: A("v_mul_f32 v%d, v%d, v%d" % (OA + i, MR, ACC + i))
        else: A("v_fmac_f32 v%d, v%d, v%d" % (OA + i, MR + k, ACC + 16 * k + i))
for k in range(8):
    A("s_waitcnt vmcnt(%d)" % (32 - 4 * k - 1))
    A("v_mfma_f32_16x16x32_bf16 %s, %s, %s, 0" % (v(ACC + 16 * k + 12, 4), v(ONES, 4), v(PB + 4 * k, 4)))
    for c in range(3):
        A("s_waitcnt vmcnt(%d)" % (32 - 4 * k - 2 - c))
        A("v_mfma_f32_16x16x32_bf16 %s, %s, %s, 0" % (v(ACC + 16 * k + 4 * c, 4), vp(k, c), v(PB + 4 * k, 4)))
    if k >= 1: combine(k - 1)
combine(7)
A("v_rcp_f32 v%d, v%d" % (OA + 12, OA + 12))
for c in range(3):
    for r in range(4):
        i = 4 * c + r
        A("v_mul_f32 v%d, v%d, v%d" % (OA + i, OA + i, OA + 12))
        src = 12 + 2 * c + (r >> 1)
        if r & 1: A("v_and_b32 v34, s%d, v%d" % (MASK, src))
        else: A("v_lshlrev_b32 v34, 16, v%d" % src)
        A("v_fma_f32 v%d, v%d, v%d, v34" % (OA + i, OA + i, GP + i))
    A("v_cvt_pk_bf16_f32 v%d, v%d, v%d" % (230 + 2 * c, OA + 4 * c, OA + 4 * c + 1))
    A("v_cvt_pk_bf16_f32 v%d, v%d, v%d" % (231 + 2 * c, OA + 4 * c + 2, OA + 4 * c + 3))
    A("buffer_store_dwordx2 %s, v8, %s, s8 offen offset:%d" % (v(230 + 2 * c, 2), s(SOUT, 4), 32 * c))
if DBGST:
    A("s_waitcnt vmcnt(0)")
    A("s_memrealtime s[4:5]")
    A("s_waitcnt lgkmcnt(0)")
    A("v_mov_b32 v252, 0")
    A("v_cmp_eq_u32 vcc, 0, v0")
    A("s_and_saveexec_b64 s[16:17], vcc")
    A("s_cmp_lt_u32 s%d, 24" % SLOT)
    A("s_cbranch_scc0 L_dbg_aux")
    for i, r in enumerate([80 + 2 * i for i in range(11)] + [68, 4]):
        A("s_sub_u32 s6, s%d, s%d" % (r, NONCE))
        A("s_add_u32 s6, s6, 100")
        A("v_mov_b32 v250, s6")
        A("buffer_atomic_umax v250, v252, %s, 0 offen offset:%d" % (s(SDBG, 4), 4 + 4 * i))
    A("s_branch L_end")
    A("L_dbg_aux:")
    A("s_cmp_lt_u32 s%d, 28" % SLOT)
    A("s_cbranch_scc1 L_end")
    A("s_cmp_ge_u32 s%d, 6" % XCD)
    A("s_cbranch_scc1 L_end")
    for i, r in enumerate([84, 88]):
        A("s_sub_u32 s6, s%d, s%d" % (r, NONCE))
        A("s_add_u32 s6, s6, 100")
        A("v_mov_b32 v250, s6")
        A("buffer_atomic_umax v250, v252, %s, 0 offen offset:%d" % (s(SDBG, 4), 56 + 4 * i))
elif STAMPS:
    A("s_waitcnt vmcnt(0)")
    A("s_memrealtime s[4:5]")
    A("s_waitcnt lgkmcnt(0)")
    dump_stamps()
    A("v_mov_b32 v250, s4")
    A("v_mov_b32 v251, s5")
    A("v_cmp_eq_u32 vcc, 0, v0")
    A("s_and_saveexec_b64 s[16:17], vcc")
    A("buffer_store_dwordx2 v[250:251], v252, %s, s14 offen offset:96" % s(SWS, 4))
    A("v_mov_b32 v250, s68")
    A("v_mov_b32 v251, s69")
    A("buffer_store_dwordx2 v[250:251], v252, %s, s14 offen offset:88" % s(SWS, 4))
    A("s_mov_b64 exec, s[16:17]")
A("L_end:")
A("s_endpgm")
A.end_kernel(NAME, 256, accum=256, agpr=256)
A.lines = [l for l in A.lines if l is not None]
A.lines = hazard.fix(A.lines, verbose=True)
A.launches.append("; @launch grid=(256,1,1) block=(256,1,1) lds=%d" % LDS_BYTES)
open(OUT, "w").write(A.text(HEADER))
```
